```python
import torch

def _softmax(x, axis=-1):
    return torch.softmax(x, dim=axis)
def _gelu(x):
    return torch.nn.functional.gelu(x, approximate="tanh")
def _silu(x):
    return torch.nn.functional.silu(x)
def _sigmoid(x):
    return torch.sigmoid(x)
def _layernorm(x, axis=-1, eps=1e-5):
    m = x.mean(dim=axis, keepdim=True)
    v = x.var(dim=axis, keepdim=True, unbiased=False)
    return (x - m) / torch.sqrt(v + eps)
def _scatter_add(tgt, idx, src, axis=0):
    return tgt.clone().index_add_(axis, idx, src)
def _segment_sum(src, seg, n):
    out = torch.zeros((n,) + src.shape[1:], dtype=src.dtype)
    return out.index_add_(0, seg, src)
def _pad(x, pw):
    flat = tuple(v for pair in reversed(pw) for v in pair)
    return torch.nn.functional.pad(x, flat)

kernel_name = 'standalone__structured_sparse_n_m__ragged'

def setup_inputs():

    _w = (lambda a: (lambda t: t.to(torch.bfloat16) if t.is_floating_point() else t)(torch.as_tensor(a)))
    B, S, D = 16, 512, 1024
    assert D % 4 == 0, "d_model must be divisible by M=4 for 2:4 sparsity"
    return {
        "x": _w((lambda *s: torch.randn(*s, dtype=torch.bfloat16) * 0.05)(B, S, D)),
        "w": _w((lambda *s: torch.randn(*s, dtype=torch.bfloat16) * 0.05)(D, D)),
        "b": _w((lambda *s: torch.randn(*s, dtype=torch.bfloat16) * 0.05)(D)),
    }

def reference(x, w, b):
    B, S, D = x.shape
    N, M = 2, 4
    G = D // M
    wg = w.reshape(G, M, D)
    mag = torch.abs(wg)
    order = torch.argsort(mag, 1)
    thr = (lambda x, i, axis: torch.take_along_dim(x, i, dim=axis))(mag, order[:, M - N:M - N + 1, :], 1)
    mask = (lambda x, dt: x.to(dt))(mag >= thr, w.dtype)
    wp = (wg * mask).reshape(D, D)
    return torch.einsum("bsd,df->bsf", x, wp) + b
```

```python
import sys

KNAME = "standalone__structured_sparse_n_m__ragged_kernel"

HEADER = """; Kernarg layout for this problem (48 bytes, ptrs only, base s[0:1]):
; @launch grid=(256,1,1) block=(512,1,1) lds=163840
.amdgcn_target "amdgcn-amd-amdhsa--gfx950"
.text
.globl {k}
.p2align 8
.type {k},@function
{k}:
"""

FOOTER = """
.section .rodata,"a"
.p2align 6
.amdhsa_kernel {k}
  .amdhsa_next_free_vgpr {nv}
  .amdhsa_next_free_sgpr 64
  .amdhsa_accum_offset {ao}
  .amdhsa_group_segment_fixed_size 0
  .amdhsa_kernarg_size 48
  .amdhsa_user_sgpr_count 2
  .amdhsa_user_sgpr_kernarg_segment_ptr 1
  .amdhsa_system_sgpr_workgroup_id_x 1
.end_amdhsa_kernel
"""

A_BASE = 32768
A_STAGE = 32768
B_SLOT = 16384

S_X, S_W, S_B, S_O = 12, 16, 20, 24
S_WAVE = 3
S_MBLK, S_NBLK = 32, 33
S_KA, S_KB, S_CNT = 28, 29, 30
S_M0B = 34
S_ABS = 35
S_SH15 = 36
S_XSZ, S_WSZ = 37, 38
S_T0, S_T1 = 40, 41
S_MB = 44

out = []
def e(s):
    out.append("  " + s)
def lab(s):
    out.append(s + ":")

ACC = 128
def acc(nb, mb):
    b = ACC + (nb * 4 + mb) * 16
    return b
def accr(nb, mb):
    b = acc(nb, mb)
    return f"v[{b}:{b+15}]"
FR = 32
def xfrag(p, mb):
    b = FR + p * 24 + mb * 4
    return b
def wfrag(p, nb):
    b = FR + p * 24 + 16 + nb * 4
    return b
V_XRD = 4
V_WRD = 12
V_T = 16

def cons_reads(stage, slot, s, p):
    r = []
    sp = stage >> 1
    def wr(nb):
        b = wfrag(p, nb)
        for j2 in range(2):
            off = slot * B_SLOT + (16 * s + 4 * j2) * 256
            r.append(f"ds_read_b64_tr_b16 v[{b+2*j2}:{b+2*j2+1}], v{V_WRD+nb} offset:{off}")
    def xr(mb):
        b = xfrag(p, mb)
        off = (stage & 1) * A_STAGE + mb * 4096
        r.append(f"ds_read_b128 v[{b}:{b+3}], v{V_XRD + sp*4 + s} offset:{off}")
    wr(0)
    for mb in range(4):
        xr(mb)
    wr(1)
    return r

def cons_mfmas(p):
    r = []
    for nb in range(2):
        for mb in range(4):
            w = wfrag(p, nb); x = xfrag(p, mb)
            r.append(f"v_mfma_f32_32x32x16_bf16 {accr(nb,mb)}, v[{w}:{w+3}], v[{x}:{x+3}], {accr(nb,mb)}")
    return r

def interleave(mf, fill, per=2):
    fi = 0
    for m in mf:
        e(m)
        for _ in range(per):
            if fi < len(fill):
                e(fill[fi]); fi += 1
    while fi < len(fill):
        e(fill[fi]); fi += 1

def gen():
    out.clear()
    e("s_cmp_ge_u32 s2, 256")
    e("s_cbranch_scc1 L_end")
    e("s_load_dwordx8 s[4:11], s[0:1], 0")
    e("v_lshrrev_b32 v1, 6, v0")
    e("v_and_b32 v2, 63, v0")
    e("s_and_b32 s32, s2, 7")
    e("v_readfirstlane_b32 s3, v1")
    e("s_lshr_b32 s33, s2, 3")
    e("s_lshl_b32 s32, s32, 2")
    e("s_lshr_b32 s40, s33, 3")
    e("s_add_u32 s32, s32, s40")
    e("s_and_b32 s33, s33, 7")
    e("s_mov_b32 s37, 0x1000000")
    e("s_mov_b32 s38, 0x200000")
    e("s_waitcnt lgkmcnt(0)")
    for (srd, p, sz) in ((S_X, 4, "0x1000000"), (S_W, 6, "0x200000"), (S_B, 8, "0x800"), (S_O, 10, "0x1000000")):
        e(f"s_mov_b32 s{srd}, s{p}")
        e(f"s_and_b32 s{srd+1}, s{p+1}, 0xffff")
        e(f"s_mov_b32 s{srd+2}, {sz}")
        e(f"s_mov_b32 s{srd+3}, 0x00020000")
    e("s_cmp_ge_u32 s3, 4")
    e("s_cbranch_scc1 L_producer")

    e("s_setprio 2")
    e("s_lshr_b32 s40, s3, 1")
    e("s_and_b32 s41, s3, 1")
    e("v_lshrrev_b32 v3, 5, v2")
    e("v_and_b32 v14, 31, v2")
    e("v_bfe_u32 v15, v2, 1, 3")
    e("s_lshl_b32 s42, s33, 8")
    e("s_lshl_b32 s43, s41, 7")
    e("s_add_u32 s42, s42, s43")
    e("v_lshlrev_b32 v16, 3, v3")
    e("v_add_u32 v16, s42, v16")
    for nb in range(2):
        for q in range(4):
            b = 80 + (nb * 4 + q) * 2
            e(f"buffer_load_dwordx2 v[{b}:{b+1}], v16, s[{S_B}:{S_B+3}], 0 offen offset:{nb*64+q*16}")
    e("s_lshl_b32 s42, s40, 14")
    e(f"s_add_u32 s42, s42, {A_BASE}")
    e("v_lshlrev_b32 v17, 7, v14")
    e("v_add_u32 v17, s42, v17")
    for s in range(4):
        e(f"v_add_u32 v18, {2*s}, v3")
        e("v_xor_b32 v18, v18, v15")
        e(f"v_lshl_add_u32 v{V_XRD+s}, v18, 4, v17")
        e(f"v_add_u32 v{V_XRD+4+s}, 0x10000, v{V_XRD+s}")
    e("v_bfe_u32 v18, v2, 2, 2")
    e("v_lshl_add_u32 v19, v3, 3, v18")
    e("v_lshlrev_b32 v19, 8, v19")
    e("v_bfe_u32 v20, v2, 4, 1")
    e("v_lshl_add_u32 v19, v20, 5, v19")
    e("v_and_b32 v20, 3, v2")
    e("v_lshl_add_u32 v19, v20, 3, v19")
    e("s_lshl_b32 s42, s41, 1")
    for nb in range(2):
        e(f"s_add_u32 s43, s42, {nb}")
        e("v_xor_b32 v20, s43, v18")
        e(f"v_lshl_add_u32 v{V_WRD+nb}, v20, 6, v19")
    for r in range(FR + 24, FR + 48):
        e(f"v_mov_b32 v{r}, 0")
    e("s_lshl_b32 s42, s32, 8")
    e("s_lshl_b32 s43, s40, 7")
    e("s_add_u32 s42, s42, s43")
    e("v_add_u32 v20, s42, v14")
    e("v_lshlrev_b32 v20, 11, v20")
    e("s_lshl_b32 s42, s33, 8")
    e("s_lshl_b32 s43, s41, 7")
    e("s_add_u32 s42, s42, s43")
    e("v_lshl_add_u32 v21, v3, 4, s42")
    e("v_add_u32 v1, v20, v21")
    for mb in range(4):
        e(f"s_mov_b32 s{S_MB+mb}, {mb*65536}")
    e("s_waitcnt vmcnt(0)")
    e("s_mov_b32 s42, 0xffff0000")
    for nb in range(2):
        for q in range(4):
            b = 80 + (nb * 4 + q) * 2
            a = acc(nb, 0) + 4 * q
            e(f"v_lshlrev_b32 v{a}, 16, v{b}")
            e(f"v_and_b32 v{a+1}, s42, v{b}")
            e(f"v_lshlrev_b32 v{a+2}, 16, v{b+1}")
            e(f"v_and_b32 v{a+3}, s42, v{b+1}")
    for nb in range(2):
        for mb in range(1, 4):
            for r in range(16):
                e(f"v_mov_b32 v{acc(nb,mb)+r}, v{acc(nb,0)+r}")
    e("s_mov_b32 s30, 0")
    e("s_barrier")
    lab("L_cloop")
    for u in range(4):
        stage = u; slot = u & 1
        interleave(cons_mfmas(1), cons_reads(stage, slot, 0, 0))
        e("s_waitcnt lgkmcnt(0)")
        interleave(cons_mfmas(0), cons_reads(stage, slot, 1, 1))
        e("s_waitcnt lgkmcnt(0)")
        interleave(cons_mfmas(1), cons_reads(stage, slot, 2, 0))
        e("s_waitcnt lgkmcnt(0)")
        interleave(cons_mfmas(0), cons_reads(stage, slot, 3, 1))
        e("s_waitcnt lgkmcnt(0)")
        if u == 3:
            e("s_add_u32 s30, s30, 1")
            e("s_cmp_lt_u32 s30, 4")
        e("s_barrier")
    e("s_cbranch_scc1 L_cloop")
    for m in cons_mfmas(1):
        e(m)
    e("s_nop 15")
    e("s_nop 15")
    for nb in range(2):
        for mb in range(4):
            a = acc(nb, mb)
            t = V_T if ((nb * 4 + mb) & 1) == 0 else V_T + 8
            for j in range(8):
                e(f"v_cvt_pk_bf16_f32 v{t+j}, v{a+2*j}, v{a+2*j+1}")
            e("s_nop 1")
            for qq in range(2):
                b = t + qq * 4
                e(f"v_permlane32_swap_b32 v{b}, v{b+2}")
                e(f"v_permlane32_swap_b32 v{b+1}, v{b+3}")
            e("s_nop 0")
            for qq in range(2):
                b = t + qq * 4
                e(f"buffer_store_dwordx4 v[{b}:{b+3}], v1, s[{S_O}:{S_O+3}], s{S_MB+mb} offen offset:{nb*64+qq*32}")
    e("s_endpgm")

    lab("L_producer")
    e("s_sub_u32 s3, s3, 4")
    e("s_mov_b32 s35, 0x7fff7fff")
    e("s_mov_b32 s36, 0x000f000f")
    e("s_lshl_b32 s40, s32, 8")
    e("s_lshl_b32 s41, s3, 6")
    e("s_add_u32 s40, s40, s41")
    e("v_lshrrev_b32 v20, 3, v2")
    e("v_add_u32 v20, s40, v20")
    e("v_lshlrev_b32 v20, 11, v20")
    e("v_lshrrev_b32 v21, 4, v2")
    e("v_and_b32 v22, 7, v2")
    e("v_xor_b32 v23, v22, v21")
    e("v_xor_b32 v24, 4, v23")
    e("v_lshl_add_u32 v23, v23, 4, v20")
    e("v_lshl_add_u32 v24, v24, 4, v20")
    for i in range(8):
        src = 23 if (i & 1) == 0 else 24
        add = i * 16384 - (i & 3) * 1024
        e(f"v_add_u32 v{4+i}, {add}, v{src}")
    e("s_lshl_b32 s34, s3, 13")
    e(f"s_add_u32 s34, s34, {A_BASE}")
    e("s_lshl_b32 s40, s3, 2")
    e("v_add_u32 v20, s40, v21")
    e("v_and_b32 v22, 15, v2")
    e("v_lshlrev_b32 v23, 13, v20")
    e("s_lshl_b32 s41, s33, 8")
    e("v_lshl_add_u32 v24, v22, 4, s41")
    e("v_add_u32 v12, v23, v24")
    e("v_add_u32 v13, 0x1000, v12")
    e("v_lshlrev_b32 v23, 10, v20")
    e("v_and_b32 v24, 3, v22")
    e("v_lshl_add_u32 v23, v24, 4, v23")
    e("v_lshrrev_b32 v24, 2, v22")
    for i in range(4):
        e(f"v_xor_b32 v25, {i}, v24")
        e(f"v_lshl_add_u32 v25, v25, 6, v23")
        e(f"v_add_u32 v{14+i}, {i*256}, v25")

    def b_loads(q, soff):
        for i in range(4):
            b = 32 + q * 16 + i * 4
            va = 12 + (i >> 1)
            e(f"buffer_load_dwordx4 v[{b}:{b+3}], v{va}, s[{S_W}:{S_W+3}], {soff} offen offset:{(i&1)*2048}")
    def a_dma(stage, soff):
        for half in range(2):
            e(f"s_add_u32 m0, s34, {stage*A_STAGE + half*4096}")
            e("s_nop 0")
            for i4 in range(4):
                i = half * 4 + i4
                e(f"buffer_load_dwordx4 v{4+i}, s[{S_X}:{S_X+3}], {soff} offen offset:{i4*1024} lds")
    def prune(q, slot):
        T = 64
        for d in range(4):
            w = [32 + q * 16 + i * 4 + d for i in range(4)]
            a = [T + i for i in range(4)]
            for i in range(4):
                e(f"v_and_b32 v{a[i]}, s35, v{w[i]}")
            e(f"v_pk_max_u16 v{T+4}, v{a[0]}, v{a[1]}")
            e(f"v_pk_min_u16 v{T+5}, v{a[0]}, v{a[1]}")
            e(f"v_pk_max_u16 v{T+6}, v{a[2]}, v{a[3]}")
            e(f"v_pk_min_u16 v{T+7}, v{a[2]}, v{a[3]}")
            e(f"v_pk_min_u16 v{T+4}, v{T+4}, v{T+6}")
            e(f"v_pk_max_u16 v{T+5}, v{T+5}, v{T+7}")
            e(f"v_pk_max_u16 v{T+4}, v{T+4}, v{T+5}")
            for i in range(4):
                e(f"v_pk_sub_i16 v{a[i]}, v{a[i]}, v{T+4}")
            for i in range(4):
                e(f"v_pk_ashrrev_i16 v{a[i]}, s36, v{a[i]}")
            for i in range(4):
                e(f"v_bfi_b32 v{w[i]}, v{a[i]}, 0, v{w[i]}")
        for i in range(4):
            b = 32 + q * 16 + i * 4
            e(f"ds_write_b128 v{14+i}, v[{b}:{b+3}] offset:{slot*B_SLOT}")

    e("s_mov_b32 s28, 0")
    e("s_mov_b32 s29, 0")
    b_loads(0, "s29")
    a_dma(0, "s28")
    e("s_mov_b32 s28, 128")
    a_dma(1, "s28")
    e("s_mov_b32 s29, 0x20000")
    b_loads(1, "s29")
    e("s_mov_b32 s28, 256")
    a_dma(2, "s28")
    e("s_waitcnt vmcnt(28)")
    prune(0, 0)
    e("s_waitcnt vmcnt(20) lgkmcnt(0)")
    e("s_mov_b32 s28, 384")
    e("s_mov_b32 s29, 0x40000")
    e("s_mov_b32 s30, 0")
    e("s_barrier")
    lab("L_ploop")
    for u in range(4):
        e("s_cmp_lt_u32 s29, 0x200000")
        e(f"s_cselect_b32 s{S_W+2}, s38, 0")
        e("s_cmp_lt_u32 s28, 2048")
        e(f"s_cselect_b32 s{S_X+2}, s37, 0")
        b_loads(u & 1, "s29")
        a_dma((u + 3) & 3, "s28")
        e("s_add_u32 s28, s28, 128")
        e("s_add_u32 s29, s29, 0x20000")
        e("s_waitcnt vmcnt(20)")
        prune((u + 1) & 1, (u + 1) & 1)
        e("s_waitcnt lgkmcnt(0)")
        if u == 3:
            e("s_add_u32 s30, s30, 1")
            e("s_cmp_lt_u32 s30, 4")
        e("s_barrier")
    e("s_cbranch_scc1 L_ploop")
    lab("L_end")
    e("s_endpgm")
    return HEADER.format(k=KNAME) + "\n".join(out) + "\n" + FOOTER.format(k=KNAME, nv=256, ao=256)

if __name__ == "__main__":
    path = sys.argv[1] if len(sys.argv) > 1 else "standalone__structured_sparse_n_m__ragged.s"
    open(path, "w").write(gen())
    print("wrote", path)
```

```python
import sys

KNAME = "standalone__structured_sparse_n_m__ragged_kernel"
LDS_BYTES = 147456

HEADER = """; Kernarg layout for this problem (48 bytes, ptrs only, base s[0:1]):
; @launch grid=(256,1,1) block=(512,1,1) lds={lds}
.amdgcn_target "amdgcn-amd-amdhsa--gfx950"
.text
.globl {k}
.p2align 8
.type {k},@function
{k}:
"""

FOOTER = """
.section .rodata,"a"
.p2align 6
.amdhsa_kernel {k}
  .amdhsa_next_free_vgpr {nv}
  .amdhsa_next_free_sgpr 64
  .amdhsa_accum_offset {ao}
  .amdhsa_group_segment_fixed_size 0
  .amdhsa_kernarg_size 48
  .amdhsa_user_sgpr_count 2
  .amdhsa_user_sgpr_kernarg_segment_ptr 1
  .amdhsa_system_sgpr_workgroup_id_x 1
.end_amdhsa_kernel
"""

A_BASE = 49152
A_STAGE = 32768
B_SLOT = 16384
S_X, S_W, S_B, S_O = 12, 16, 20, 24

STAMP = False
FLAGS = set()
out = []
def e(s):
    out.append("  " + s)
def lab(s):
    out.append(s + ":")

def _st(off):
    e("s_memtime s[50:51]")
    e("s_waitcnt lgkmcnt(0)")
    e("v_mov_b32 v30, s50")
    e(f"buffer_store_dword v30, v31, s[52:55], 0 offen offset:{off}")
def stamp():
    if not STAMP: return
    _st(0)
    e("v_add_u32 v31, 4, v31")
def stamp2():
    if "stamp2" not in FLAGS: return
    _st(124)
def rstamp():
    if not STAMP: return
    e("s_memrealtime s[50:51]")
    e("s_waitcnt lgkmcnt(0)")
    e("v_mov_b32 v30, s50")
    e("buffer_store_dword v30, v31, s[52:55], 0 offen offset:256")

ACC = 128
def acc(nb, mb):
    return ACC + (nb * 4 + mb) * 16
def accr(nb, mb):
    b = acc(nb, mb)
    return f"v[{b}:{b+15}]"
FR = 32
def xfrag(p, mb):
    return FR + p * 24 + mb * 4
def wfrag(p, nb):
    return FR + p * 24 + 16 + nb * 4
V_XRD = 4
V_WRD = 12
V_EW = 96
V_T = 100
V_DMA = 116

def cons_reads(s, p):
    r = []
    def wr(nb):
        b = wfrag(p, nb)
        for j2 in range(2):
            off = (16 * s + 4 * j2) * 256
            r.append(f"ds_read_b64_tr_b16 v[{b+2*j2}:{b+2*j2+1}], v{V_WRD+nb} offset:{off}")
    def xr(mb):
        b = xfrag(p, mb)
        off = mb * 4096
        r.append(f"ds_read_b128 v[{b}:{b+3}], v{V_XRD + s} offset:{off}")
    wr(0)
    for mb in range(4):
        xr(mb)
    wr(1)
    return r

def cons_mfmas(p):
    r = []
    for nb in range(2):
        for mb in range(4):
            w = wfrag(p, nb); x = xfrag(p, mb)
            r.append(f"v_mfma_f32_32x32x16_bf16 {accr(nb,mb)}, v[{w}:{w+3}], v[{x}:{x+3}], {accr(nb,mb)}")
    return r

def a_dma():
    r = []
    for half in range(2):
        for i4 in range(4):
            i = half * 4 + i4
            g = []
            if i4 == 0:
                g.append(f"s_add_u32 m0, s34, {half*4096}")
                g.append("s_nop 0")
            g.append(f"buffer_load_dwordx4 v{V_DMA+i}, s[{S_X}:{S_X+3}], s28 offen offset:{i4*1024} lds")
            r.append(g)
    return r

def kstep(mf, reads, extra):
    fi = 0
    for i, m in enumerate(mf):
        e(m)
        for _ in range(2):
            if fi < len(reads):
                e(reads[fi]); fi += 1
        for x in extra.get(i, []): e(x)

def merge(main, side):
    res = []
    n = len(side)
    if n == 0:
        return list(main)
    L = len(main)
    si = 0
    for i, m in enumerate(main):
        while si < n and si * L <= i * n:
            res.extend(side[si]); si += 1
        res.append(m)
    while si < n:
        res.extend(side[si]); si += 1
    return res

def gen():
    out.clear()
    e("s_cmp_ge_u32 s2, 256")
    e("s_cbranch_scc1 L_end")
    e("s_load_dwordx8 s[4:11], s[0:1], 0")
    e("v_lshrrev_b32 v1, 6, v0")
    e("v_and_b32 v2, 63, v0")
    e("s_and_b32 s32, s2, 7")
    e("v_readfirstlane_b32 s3, v1")
    e("s_lshr_b32 s33, s2, 3")
    e("s_lshl_b32 s32, s32, 2")
    e("s_lshr_b32 s40, s33, 3")
    e("s_add_u32 s32, s32, s40")
    e("s_and_b32 s33, s33, 7")
    e("s_mov_b32 s37, 0x1000000")
    e("s_mov_b32 s38, 0x200000")
    e("s_mov_b32 s39, s3")
    if "norot" in FLAGS:
        e("s_mov_b32 s28, 0")
    else:
        e("s_and_b32 s28, s32, 3")
        e("s_lshl_b32 s28, s28, 9")
    e("s_lshl_b32 s29, s28, 10")
    e("s_waitcnt lgkmcnt(0)")
    for (srd, p, sz) in ((S_X, 4, "0x1000000"), (S_W, 6, "0x200000"), (S_B, 8, "0x800"), (S_O, 10, "0x1000000")):
        e(f"s_mov_b32 s{srd}, s{p}")
        e(f"s_and_b32 s{srd+1}, s{p+1}, 0xffff")
        e(f"s_mov_b32 s{srd+2}, {sz}")
        e(f"s_mov_b32 s{srd+3}, 0x00020000")
    if STAMP:
        e("s_load_dwordx2 s[52:53], s[0:1], 40")
        e("s_waitcnt lgkmcnt(0)")
        e("s_and_b32 s53, s53, 0xffff")
        e("s_mov_b32 s54, 0x1000000")
        e("s_mov_b32 s55, 0x00020000")
        e("s_lshl_b32 s56, s2, 3")
        e("s_add_u32 s56, s56, s3")
        e("s_lshl_b32 s56, s56, 10")
        e("v_mov_b32 v31, s56")
        rstamp()
        stamp()
    e("s_cmp_ge_u32 s3, 4")
    e("s_cbranch_scc1 L_producer")

    def adv_a():
        return ["s_add_u32 s28, s28, 128", "s_and_b32 s28, s28, 2047"]
    def adv_b():
        e("s_add_u32 s29, s29, 0x20000")
        e("s_and_b32 s29, s29, 0x1fffff")

    if "noprio" not in FLAGS:
        e("s_setprio 2")
    e("s_lshl_b32 s40, s32, 8")
    e("s_lshl_b32 s41, s3, 6")
    e("s_add_u32 s40, s40, s41")
    e("v_lshrrev_b32 v20, 3, v2")
    e("v_add_u32 v20, s40, v20")
    e("v_lshlrev_b32 v20, 11, v20")
    e("v_lshrrev_b32 v21, 4, v2")
    e("v_and_b32 v22, 7, v2")
    e("v_xor_b32 v23, v22, v21")
    e("v_xor_b32 v24, 4, v23")
    e("v_lshl_add_u32 v23, v23, 4, v20")
    e("v_lshl_add_u32 v24, v24, 4, v20")
    for i in range(8):
        src = 23 if (i & 1) == 0 else 24
        add = i * 16384 - (i & 3) * 1024
        e(f"v_add_u32 v{V_DMA+i}, {add}, v{src}")
    e("s_lshl_b32 s35, s3, 13")
    e(f"s_add_u32 s35, s35, {A_BASE}")
    e("s_mov_b32 s34, s35")
    e("s_lshr_b32 s40, s3, 1")
    e("s_and_b32 s41, s3, 1")
    e("v_lshrrev_b32 v3, 5, v2")
    e("s_lshl_b32 s42, s33, 8")
    e("s_lshl_b32 s43, s41, 7")
    e("s_add_u32 s42, s42, s43")
    e("v_lshlrev_b32 v16, 3, v3")
    e("v_add_u32 v16, s42, v16")
    for st in range(2):
        for g in a_dma():
            for x in g: e(x)
        for x in adv_a(): e(x)
        e(f"s_add_u32 s34, s34, {A_STAGE}")
        if st == 0:
            for nb in range(2):
                for q in range(4):
                    b = 80 + (nb * 4 + q) * 2
                    e(f"buffer_load_dwordx2 v[{b}:{b+1}], v16, s[{S_B}:{S_B+3}], 0 offen offset:{nb*64+q*16}")
    e("v_and_b32 v24, 31, v2")
    e("v_bfe_u32 v25, v2, 1, 3")
    e("s_lshl_b32 s42, s40, 14")
    e(f"s_add_u32 s42, s42, {A_BASE}")
    e("v_lshlrev_b32 v17, 7, v24")
    e("v_add_u32 v17, s42, v17")
    for s in range(4):
        e(f"v_add_u32 v18, {2*s}, v3")
        e("v_xor_b32 v18, v18, v25")
        e(f"v_lshl_add_u32 v{V_XRD+4+s}, v18, 4, v17")
        e(f"v_mov_b32 v{V_XRD+s}, v{V_XRD+4+s}")
    e("v_bfe_u32 v18, v2, 2, 2")
    e("v_lshl_add_u32 v19, v3, 3, v18")
    e("v_lshlrev_b32 v19, 8, v19")
    e("v_bfe_u32 v20, v2, 4, 1")
    e("v_lshl_add_u32 v19, v20, 5, v19")
    e("v_and_b32 v20, 3, v2")
    e("v_lshl_add_u32 v19, v20, 3, v19")
    e("s_lshl_b32 s42, s41, 1")
    for nb in range(2):
        e(f"s_add_u32 s43, s42, {nb}")
        e("v_xor_b32 v20, s43, v18")
        e(f"v_lshl_add_u32 v{V_WRD+2+nb}, v20, 6, v19")
        e(f"v_mov_b32 v{V_WRD+nb}, v{V_WRD+2+nb}")
    for r in range(FR + 24, FR + 48):
        e(f"v_mov_b32 v{r}, 0")
    e("s_lshl_b32 s42, s40, 15")
    e(f"s_add_u32 s42, s42, {A_BASE}")
    e("v_lshlrev_b32 v20, 8, v24")
    e("v_add_u32 v20, s42, v20")
    e("v_and_b32 v21, 7, v2")
    e("s_lshl_b32 s42, s41, 3")
    for nb in range(2):
        for qq in range(2):
            e(f"s_add_u32 s43, s42, {nb*4+qq*2}")
            e("v_add_u32 v22, s43, v3")
            e("v_xor_b32 v22, v22, v21")
            e(f"v_lshl_add_u32 v{V_EW+nb*2+qq}, v22, 4, v20")
    e("s_waitcnt vmcnt(8)")
    e("s_mov_b32 s42, 0xffff0000")
    for nb in range(2):
        for q in range(4):
            b = 80 + (nb * 4 + q) * 2
            a = acc(nb, 0) + 4 * q
            e(f"v_lshlrev_b32 v{a}, 16, v{b}")
            e(f"v_and_b32 v{a+1}, s42, v{b}")
            e(f"v_lshlrev_b32 v{a+2}, 16, v{b+1}")
            e(f"v_and_b32 v{a+3}, s42, v{b+1}")
    for nb in range(2):
        for mb in range(1, 4):
            for r in range(16):
                e(f"v_mov_b32 v{acc(nb,mb)+r}, v{acc(nb,0)+r}")
    e("s_mov_b32 s31, 0")
    e("s_mov_b32 s44, 0")
    e(f"s_mov_b32 s45, {2*A_STAGE}")
    stamp()
    e("s_barrier")
    stamp()
    lab("L_cloop")
    d = a_dma()
    pre = ["s_cmp_lt_u32 s31, 14", f"s_cselect_b32 s{S_X+2}, s37, 0", "s_add_u32 s34, s35, s45"]
    kstep(cons_mfmas(1), cons_reads(0, 0), {3: pre, 4: d[0], 6: d[1]})
    e("s_waitcnt lgkmcnt(0)")
    kstep(cons_mfmas(0), cons_reads(1, 1), {4: d[2], 6: d[3]})
    e("s_waitcnt lgkmcnt(0)")
    adv = [f"s_add_u32 s44, s44, {B_SLOT}", f"s_cmp_eq_u32 s44, {3*B_SLOT}", "s_cselect_b32 s44, 0, s44",
           "s_lshl_b32 s46, s44, 1",
           f"s_add_u32 s45, s45, {A_STAGE}", f"s_cmp_eq_u32 s45, {3*A_STAGE}", "s_cselect_b32 s45, 0, s45"]
    kstep(cons_mfmas(1), cons_reads(2, 0), {4: d[4], 5: adv[:4], 6: d[5], 7: adv[4:]})
    e("s_waitcnt lgkmcnt(0)")
    upd = [f"v_add_u32 v{V_XRD+s}, s46, v{V_XRD+4+s}" for s in range(4)] + \
          [f"v_add_u32 v{V_WRD+nb}, s44, v{V_WRD+2+nb}" for nb in range(2)]
    kstep(cons_mfmas(0), cons_reads(3, 1), {4: d[6] + upd[:3], 5: upd[3:], 6: d[7] + adv_a(), 7: ["s_add_u32 s31, s31, 1", "s_cmp_lt_u32 s31, 16"]})
    e("s_cbranch_scc1 L_cnodrain")
    e("s_waitcnt vmcnt(0)")
    lab("L_cnodrain")
    e("s_waitcnt vmcnt(8) lgkmcnt(0)")
    stamp()
    e("s_barrier")
    stamp2()
    e("s_cbranch_scc1 L_cloop")
    mf = cons_mfmas(1)
    blocks = [(nb, mb) for nb in range(2) for mb in range(4)]
    def conv(bi):
        nb, mb = blocks[bi]
        a = acc(nb, mb)
        t = V_T if (bi & 1) == 0 else V_T + 8
        for j in range(8):
            e(f"v_cvt_pk_bf16_f32 v{t+j}, v{a+2*j}, v{a+2*j+1}")
        e("s_nop 1")
        for qq in range(2):
            b = t + qq * 4
            e(f"v_permlane32_swap_b32 v{b}, v{b+2}")
            e(f"v_permlane32_swap_b32 v{b+1}, v{b+3}")
        for qq in range(2):
            b = t + qq * 4
            e(f"ds_write_b128 v{V_EW+nb*2+qq}, v[{b}:{b+3}] offset:{mb*8192}")
    for i, m in enumerate(mf):
        e(m)
        if i == 2:
            e("s_nop 9")
        if i >= 2:
            conv(i - 2)
    e("s_nop 15")
    conv(6)
    e("s_nop 7")
    conv(7)
    stamp()
    e("s_waitcnt lgkmcnt(0)")
    e("s_branch L_store")

    BST = 48; TP = 32
    lab("L_producer")
    e("s_sub_u32 s3, s3, 4")
    e("s_mov_b32 s35, 0x7fff7fff")
    e("s_mov_b32 s36, 0x000f000f")
    e("v_lshrrev_b32 v21, 4, v2")
    e("s_lshl_b32 s40, s3, 2")
    e("v_add_u32 v20, s40, v21")
    e("v_and_b32 v22, 15, v2")
    e("v_lshlrev_b32 v23, 13, v20")
    e("s_lshl_b32 s41, s33, 8")
    e("v_lshl_add_u32 v24, v22, 4, s41")
    e("v_add_u32 v12, v23, v24")
    e("v_add_u32 v13, 0x1000, v12")

    def b_loads(q):
        r = []
        for i in range(4):
            b = BST + q * 16 + i * 4
            va = 12 + (i >> 1)
            r.append([f"buffer_load_dwordx4 v[{b}:{b+3}], v{va}, s[{S_W}:{S_W+3}], s29 offen offset:{(i&1)*2048}"])
        return r
    def prune_col(q, d, T):
        w = [BST + q * 16 + i * 4 + d for i in range(4)]
        a = [T + i for i in range(4)]
        r = []
        for i in range(4):
            r.append(f"v_and_b32 v{a[i]}, s35, v{w[i]}")
        r.append(f"v_pk_max_u16 v{T+4}, v{a[0]}, v{a[1]}")
        r.append(f"v_pk_min_u16 v{T+5}, v{a[0]}, v{a[1]}")
        r.append(f"v_pk_max_u16 v{T+6}, v{a[2]}, v{a[3]}")
        r.append(f"v_pk_min_u16 v{T+7}, v{a[2]}, v{a[3]}")
        r.append(f"v_pk_min_u16 v{T+4}, v{T+4}, v{T+6}")
        r.append(f"v_pk_max_u16 v{T+5}, v{T+5}, v{T+7}")
        r.append(f"v_pk_max_u16 v{T+4}, v{T+4}, v{T+5}")
        for i in range(4):
            r.append(f"v_pk_sub_i16 v{a[i]}, v{a[i]}, v{T+4}")
        for i in range(4):
            r.append(f"v_pk_ashrrev_i16 v{a[i]}, s36, v{a[i]}")
        for i in range(4):
            r.append(f"v_bfi_b32 v{w[i]}, v{a[i]}, 0, v{w[i]}")
        return r
    def prune_ops(q):
        r = []
        for dp in range(2):
            c0 = prune_col(q, 2 * dp, TP)
            c1 = prune_col(q, 2 * dp + 1, TP + 8)
            for x, y in zip(c0, c1):
                r.append(x); r.append(y)
        return r
    def b_writes(q, off):
        for i in range(4):
            b = BST + q * 16 + i * 4
            e(f"ds_write_b128 v{14+i}, v[{b}:{b+3}] offset:{off}")
    def emit_groups(gs):
        for g in gs:
            for x in g: e(x)

    for q in range(4):
        emit_groups(b_loads(q))
        adv_b()
    e("v_lshlrev_b32 v23, 10, v20")
    e("v_and_b32 v24, 3, v22")
    e("v_lshl_add_u32 v23, v24, 4, v23")
    e("v_lshrrev_b32 v24, 2, v22")
    for i in range(4):
        e(f"v_xor_b32 v25, {i}, v24")
        e(f"v_lshl_add_u32 v25, v25, 6, v23")
        e(f"v_add_u32 v{4+i}, {i*256}, v25")
        e(f"v_mov_b32 v{14+i}, v{4+i}")
    e("s_waitcnt vmcnt(12)")
    for x in prune_ops(0): e(x)
    b_writes(0, 0)
    e("s_waitcnt vmcnt(8)")
    for x in prune_ops(1): e(x)
    b_writes(1, B_SLOT)
    e("s_waitcnt lgkmcnt(4)")
    e("s_mov_b32 s30, 0")
    e("s_mov_b32 s31, 0")
    e(f"s_mov_b32 s44, {2*B_SLOT}")
    stamp()
    e("s_barrier")
    stamp()
    lab("L_ploop")
    for u in range(4):
        e("s_cmp_lt_u32 s31, 12")
        e(f"s_cselect_b32 s{S_W+2}, s38, 0")
        e("s_add_u32 s31, s31, 1")
        for i in range(4):
            e(f"v_add_u32 v{14+i}, s44, v{4+i}")
        e(f"s_add_u32 s44, s44, {B_SLOT}")
        e(f"s_cmp_eq_u32 s44, {3*B_SLOT}")
        e("s_cselect_b32 s44, 0, s44")
        e("s_waitcnt vmcnt(4)")
        q = (u + 2) & 3
        for x in merge(prune_ops(q), b_loads(u)): e(x)
        b_writes(q, 0)
        adv_b()
        if u == 3:
            e("s_add_u32 s30, s30, 1")
            e("s_cmp_lt_u32 s30, 4")
        if STAMP and "pstamp" in FLAGS:
            e("s_waitcnt lgkmcnt(4)")
            e("s_memtime s[50:51]")
            e("s_waitcnt lgkmcnt(0)")
            e("v_mov_b32 v30, s50")
            e("buffer_store_dword v30, v31, s[52:55], 0 offen")
            e("v_add_u32 v31, 4, v31")
        else:
            e("s_waitcnt lgkmcnt(4)")
        e("s_barrier")
        if "pstamp" in FLAGS: stamp2()
    e("s_cbranch_scc1 L_ploop")

    lab("L_store")
    e("s_waitcnt vmcnt(0)")
    e("v_lshrrev_b32 v16, 4, v2")
    e("v_and_b32 v17, 15, v2")
    e("s_lshl_b32 s40, s39, 5")
    e("v_add_u32 v18, s40, v16")
    e("v_xor_b32 v19, v17, v16")
    e("v_xor_b32 v20, 4, v19")
    e("v_lshlrev_b32 v21, 8, v18")
    e(f"v_add_u32 v21, {A_BASE}, v21")
    e("v_lshl_add_u32 v19, v19, 4, v21")
    e("v_lshl_add_u32 v20, v20, 4, v21")
    e("s_lshl_b32 s41, s32, 8")
    e("v_add_u32 v18, s41, v18")
    e("v_lshlrev_b32 v18, 11, v18")
    e("s_lshl_b32 s41, s33, 8")
    e("v_lshl_add_u32 v21, v17, 4, s41")
    e("v_add_u32 v18, v18, v21")
    e("s_waitcnt lgkmcnt(0)")
    e("s_barrier")
    for j in range(8):
        va = 19 if (j & 1) == 0 else 20
        e(f"ds_read_b128 v[{32+4*j}:{35+4*j}], v{va} offset:{j*1024}")
    for j in range(8):
        e(f"s_mov_b32 s42, {j*8192}")
        e(f"s_waitcnt lgkmcnt({7-j})")
        e(f"buffer_store_dwordx4 v[{32+4*j}:{35+4*j}], v18, s[{S_O}:{S_O+3}], s42 offen")
    stamp()
    if STAMP:
        e("s_waitcnt vmcnt(0)")
        stamp()
        rstamp()
    lab("L_end")
    e("s_endpgm")
    return HEADER.format(k=KNAME, lds=LDS_BYTES) + "\n".join(out) + "\n" + FOOTER.format(k=KNAME, nv=256, ao=256)

if __name__ == "__main__":
    path = sys.argv[1] if len(sys.argv) > 1 else "standalone__structured_sparse_n_m__ragged.s"
    for a in sys.argv[2:]:
        if a == "stamp": STAMP = True
        else: FLAGS.add(a)
    open(path, "w").write(gen())
    print("wrote", path)
```

```python
import sys

KNAME = "standalone__structured_sparse_n_m__ragged_kernel"
LDS_BYTES = 147456

HEADER = """; Kernarg layout for this problem (48 bytes, ptrs only, base s[0:1]):
; @launch grid=(256,1,1) block=(512,1,1) lds={lds}
.amdgcn_target "amdgcn-amd-amdhsa--gfx950"
.text
.globl {k}
.p2align 8
.type {k},@function
{k}:
"""

FOOTER = """
.section .rodata,"a"
.p2align 6
.amdhsa_kernel {k}
  .amdhsa_next_free_vgpr {nv}
  .amdhsa_next_free_sgpr 64
  .amdhsa_accum_offset {ao}
  .amdhsa_group_segment_fixed_size 0
  .amdhsa_kernarg_size 48
  .amdhsa_user_sgpr_count 2
  .amdhsa_user_sgpr_kernarg_segment_ptr 1
  .amdhsa_system_sgpr_workgroup_id_x 1
.end_amdhsa_kernel
"""

A_BASE = 49152
A_STAGE = 32768
B_SLOT = 16384
S_X, S_W, S_B, S_O = 12, 16, 20, 24

STAMP = False
FLAGS = set()
out = []
def e(s):
    out.append("  " + s)
def lab(s):
    out.append(s + ":")

def _st(off):
    e("s_memtime s[50:51]")
    e("s_waitcnt lgkmcnt(0)")
    e("v_mov_b32 v30, s50")
    e(f"buffer_store_dword v30, v31, s[52:55], 0 offen offset:{off}")
def stamp():
    if not STAMP: return
    _st(0)
    e("v_add_u32 v31, 4, v31")
def stamp2():
    if "stamp2" not in FLAGS: return
    _st(124)
def rstamp():
    if not STAMP: return
    e("s_memrealtime s[50:51]")
    e("s_waitcnt lgkmcnt(0)")
    e("v_mov_b32 v30, s50")
    e("buffer_store_dword v30, v31, s[52:55], 0 offen offset:256")

ACC = 128
def acc(nb, mb):
    return ACC + (nb * 4 + mb) * 16
def accr(nb, mb):
    b = acc(nb, mb)
    return f"v[{b}:{b+15}]"
FR = 32
def xfrag(p, mb):
    return FR + p * 24 + mb * 4
def wfrag(p, nb):
    return FR + p * 24 + 16 + nb * 4
V_XRD = 4
V_WRD = 12
V_EW = 96
V_T = 100
V_DMA = 116

def cons_reads(s, p):
    r = []
    def wr(nb):
        b = wfrag(p, nb)
        for j2 in range(2):
            off = (16 * s + 4 * j2) * 256
            r.append(f"ds_read_b64_tr_b16 v[{b+2*j2}:{b+2*j2+1}], v{V_WRD+nb} offset:{off}")
    def xr(mb):
        b = xfrag(p, mb)
        off = mb * 4096
        r.append(f"ds_read_b128 v[{b}:{b+3}], v{V_XRD + s} offset:{off}")
    wr(0)
    for mb in range(4):
        xr(mb)
    wr(1)
    return r

def cons_mfmas(p):
    r = []
    for nb in range(2):
        for mb in range(4):
            w = wfrag(p, nb); x = xfrag(p, mb)
            r.append(f"v_mfma_f32_32x32x16_bf16 {accr(nb,mb)}, v[{w}:{w+3}], v[{x}:{x+3}], {accr(nb,mb)}")
    return r

def a_dma():
    r = []
    for half in range(2):
        for i4 in range(4):
            i = half * 4 + i4
            g = []
            if i4 == 0:
                g.append(f"s_add_u32 m0, s34, {half*4096}")
                g.append("s_nop 0")
            g.append(f"buffer_load_dwordx4 v{V_DMA+i}, s[{S_X}:{S_X+3}], s28 offen offset:{i4*1024} lds")
            r.append(g)
    return r

def kstep(mf, reads, extra):
    fi = 0
    for i, m in enumerate(mf):
        e(m)
        for _ in range(2):
            if fi < len(reads):
                e(reads[fi]); fi += 1
        for x in extra.get(i, []): e(x)

def merge(main, side):
    res = []
    n = len(side)
    if n == 0:
        return list(main)
    L = len(main)
    si = 0
    for i, m in enumerate(main):
        while si < n and si * L <= i * n:
            res.extend(side[si]); si += 1
        res.append(m)
    while si < n:
        res.extend(side[si]); si += 1
    return res

def gen():
    out.clear()
    e("s_cmp_ge_u32 s2, 256")
    e("s_cbranch_scc1 L_end")
    e("s_load_dwordx8 s[4:11], s[0:1], 0")
    e("v_lshrrev_b32 v1, 6, v0")
    e("v_and_b32 v2, 63, v0")
    e("s_and_b32 s32, s2, 7")
    e("v_readfirstlane_b32 s3, v1")
    e("s_lshr_b32 s33, s2, 3")
    e("s_lshl_b32 s32, s32, 2")
    e("s_lshr_b32 s40, s33, 3")
    e("s_add_u32 s32, s32, s40")
    e("s_and_b32 s33, s33, 7")
    e("s_mov_b32 s37, 0x1000000")
    e("s_mov_b32 s38, 0x200000")
    e("s_mov_b32 s39, s3")
    if "norot" in FLAGS:
        e("s_mov_b32 s28, 0")
    elif "rotn8" in FLAGS:
        e("s_lshl_b32 s28, s33, 8")
    elif "rotn4" in FLAGS:
        e("s_and_b32 s28, s33, 3")
        e("s_lshl_b32 s28, s28, 9")
    elif "rotn2" in FLAGS:
        e("s_and_b32 s28, s33, 1")
        e("s_lshl_b32 s28, s28, 10")
    else:
        e("s_and_b32 s28, s32, 3")
        e("s_lshl_b32 s28, s28, 9")
    e("s_lshl_b32 s29, s28, 10")
    e("s_waitcnt lgkmcnt(0)")
    for (srd, p, sz) in ((S_X, 4, "0x1000000"), (S_W, 6, "0x200000"), (S_B, 8, "0x800"), (S_O, 10, "0x1000000")):
        e(f"s_mov_b32 s{srd}, s{p}")
        e(f"s_and_b32 s{srd+1}, s{p+1}, 0xffff")
        e(f"s_mov_b32 s{srd+2}, {sz}")
        e(f"s_mov_b32 s{srd+3}, 0x00020000")
    if STAMP:
        e("s_load_dwordx2 s[52:53], s[0:1], 40")
        e("s_waitcnt lgkmcnt(0)")
        e("s_and_b32 s53, s53, 0xffff")
        e("s_mov_b32 s54, 0x1000000")
        e("s_mov_b32 s55, 0x00020000")
        e("s_lshl_b32 s56, s2, 3")
        e("s_add_u32 s56, s56, s3")
        e("s_lshl_b32 s56, s56, 10")
        e("v_mov_b32 v31, s56")
        rstamp()
        stamp()
    BST = 48; TP = 32
    def b_loads(q):
        r = []
        for i in range(4):
            b = BST + q * 16 + i * 4
            va = 12 + (i >> 1)
            r.append([f"buffer_load_dwordx4 v[{b}:{b+3}], v{va}, s[{S_W}:{S_W+3}], s29 offen offset:{(i&1)*2048}"])
        return r
    def prune_col(q, d, T):
        w = [BST + q * 16 + i * 4 + d for i in range(4)]
        a = [T + i for i in range(4)]
        r = []
        for i in range(4):
            r.append(f"v_and_b32 v{a[i]}, s35, v{w[i]}")
        r.append(f"v_pk_max_u16 v{T+4}, v{a[0]}, v{a[1]}")
        r.append(f"v_pk_min_u16 v{T+5}, v{a[0]}, v{a[1]}")
        r.append(f"v_pk_max_u16 v{T+6}, v{a[2]}, v{a[3]}")
        r.append(f"v_pk_min_u16 v{T+7}, v{a[2]}, v{a[3]}")
        r.append(f"v_pk_min_u16 v{T+4}, v{T+4}, v{T+6}")
        r.append(f"v_pk_max_u16 v{T+5}, v{T+5}, v{T+7}")
        r.append(f"v_pk_max_u16 v{T+4}, v{T+4}, v{T+5}")
        for i in range(4):
            r.append(f"v_pk_sub_i16 v{a[i]}, v{a[i]}, v{T+4}")
        for i in range(4):
            r.append(f"v_pk_ashrrev_i16 v{a[i]}, s36, v{a[i]}")
        for i in range(4):
            r.append(f"v_bfi_b32 v{w[i]}, v{a[i]}, 0, v{w[i]}")
        return r
    def prune_ops(q):
        r = []
        for dp in range(2):
            c0 = prune_col(q, 2 * dp, TP)
            c1 = prune_col(q, 2 * dp + 1, TP + 8)
            for x, y in zip(c0, c1):
                r.append(x); r.append(y)
        return r
    def b_writes(q, off):
        for i in range(4):
            b = BST + q * 16 + i * 4
            e(f"ds_write_b128 v{14+i}, v[{b}:{b+3}] offset:{off}")
    def emit_groups(gs):
        for g in gs:
            for x in g: e(x)

    e("s_and_b32 s40, s3, 3")
    e("s_lshr_b32 s48, s3, 2")
    e("s_mov_b32 s35, 0x7fff7fff")
    e("s_mov_b32 s36, 0x000f000f")
    e("v_lshrrev_b32 v21, 4, v2")
    e("s_lshl_b32 s40, s40, 2")
    e("v_add_u32 v20, s40, v21")
    e("v_and_b32 v22, 15, v2")
    e("v_lshlrev_b32 v23, 13, v20")
    e("s_lshl_b32 s41, s33, 8")
    e("v_lshl_add_u32 v24, v22, 4, s41")
    e("v_add_u32 v12, v23, v24")
    e("v_add_u32 v13, 0x1000, v12")
    e("s_lshl_b32 s41, s48, 17")
    e("s_add_u32 s29, s29, s41")
    e("s_and_b32 s29, s29, 0x1fffff")
    emit_groups(b_loads(1))
    e("v_lshlrev_b32 v23, 10, v20")
    e("v_and_b32 v24, 3, v22")
    e("v_lshl_add_u32 v23, v24, 4, v23")
    e("s_lshl_b32 s41, s48, 14")
    e("v_add_u32 v23, s41, v23")
    e("v_lshrrev_b32 v24, 2, v22")
    for i in range(4):
        e(f"v_xor_b32 v25, {i}, v24")
        e(f"v_lshl_add_u32 v25, v25, 6, v23")
        e(f"v_add_u32 v{26+i}, {i*256}, v25")
    e("s_cmp_ge_u32 s3, 4")
    e("s_cbranch_scc1 L_producer")

    def adv_a():
        return ["s_add_u32 s28, s28, 128", "s_and_b32 s28, s28, 2047"]
    def adv_b():
        e("s_add_u32 s29, s29, 0x20000")
        e("s_and_b32 s29, s29, 0x1fffff")

    if "noprio" not in FLAGS:
        e("s_setprio 2")
    e("s_lshl_b32 s40, s32, 8")
    e("s_lshl_b32 s41, s3, 6")
    e("s_add_u32 s40, s40, s41")
    e("v_lshrrev_b32 v20, 3, v2")
    e("v_add_u32 v20, s40, v20")
    e("v_lshlrev_b32 v20, 11, v20")
    e("v_lshrrev_b32 v21, 4, v2")
    e("v_and_b32 v22, 7, v2")
    e("v_xor_b32 v23, v22, v21")
    e("v_xor_b32 v24, 4, v23")
    e("v_lshl_add_u32 v23, v23, 4, v20")
    e("v_lshl_add_u32 v24, v24, 4, v20")
    for i in range(8):
        src = 23 if (i & 1) == 0 else 24
        add = i * 16384 - (i & 3) * 1024
        e(f"v_add_u32 v{V_DMA+i}, {add}, v{src}")
    e("s_lshl_b32 s47, s3, 13")
    e(f"s_add_u32 s47, s47, {A_BASE}")
    e("s_mov_b32 s34, s47")
    e("s_lshr_b32 s40, s3, 1")
    e("s_and_b32 s41, s3, 1")
    e("v_lshrrev_b32 v3, 5, v2")
    e("s_lshl_b32 s42, s33, 8")
    e("s_lshl_b32 s43, s41, 7")
    e("s_add_u32 s42, s42, s43")
    e("v_lshlrev_b32 v16, 3, v3")
    e("v_add_u32 v16, s42, v16")
    for st in range(2):
        for g in a_dma():
            for x in g: e(x)
        for x in adv_a(): e(x)
        e(f"s_add_u32 s34, s34, {A_STAGE}")
        if st == 0:
            for nb in range(2):
                for q in range(4):
                    b = 80 + (nb * 4 + q) * 2
                    e(f"buffer_load_dwordx2 v[{b}:{b+1}], v16, s[{S_B}:{S_B+3}], 0 offen offset:{nb*64+q*16}")
    e("v_and_b32 v24, 31, v2")
    e("v_bfe_u32 v25, v2, 1, 3")
    e("s_lshl_b32 s42, s40, 14")
    e(f"s_add_u32 s42, s42, {A_BASE}")
    e("v_lshlrev_b32 v17, 7, v24")
    e("v_add_u32 v17, s42, v17")
    for s in range(4):
        e(f"v_add_u32 v18, {2*s}, v3")
        e("v_xor_b32 v18, v18, v25")
        e(f"v_lshl_add_u32 v{V_XRD+4+s}, v18, 4, v17")
        e(f"v_mov_b32 v{V_XRD+s}, v{V_XRD+4+s}")
    e("v_bfe_u32 v18, v2, 2, 2")
    e("v_lshl_add_u32 v19, v3, 3, v18")
    e("v_lshlrev_b32 v19, 8, v19")
    e("v_bfe_u32 v20, v2, 4, 1")
    e("v_lshl_add_u32 v19, v20, 5, v19")
    e("v_and_b32 v20, 3, v2")
    e("v_lshl_add_u32 v19, v20, 3, v19")
    e("s_lshl_b32 s42, s41, 1")
    for nb in range(2):
        e(f"s_add_u32 s43, s42, {nb}")
        e("v_xor_b32 v20, s43, v18")
        e(f"v_lshl_add_u32 v{V_WRD+2+nb}, v20, 6, v19")
        e(f"v_mov_b32 v{V_WRD+nb}, v{V_WRD+2+nb}")
    e("s_lshl_b32 s42, s40, 15")
    e(f"s_add_u32 s42, s42, {A_BASE}")
    e("v_lshlrev_b32 v20, 8, v24")
    e("v_add_u32 v20, s42, v20")
    e("v_and_b32 v21, 7, v2")
    e("s_lshl_b32 s42, s41, 3")
    for nb in range(2):
        for qq in range(2):
            e(f"s_add_u32 s43, s42, {nb*4+qq*2}")
            e("v_add_u32 v22, s43, v3")
            e("v_xor_b32 v22, v22, v21")
            e(f"v_lshl_add_u32 v{V_EW+nb*2+qq}, v22, 4, v20")
    e("s_waitcnt vmcnt(24)")
    e("s_branch L_prune0")
    lab("L_cons2")
    e("s_waitcnt vmcnt(8)")
    e("s_mov_b32 s42, 0xffff0000")
    for nb in range(2):
        for q in range(4):
            b = 80 + (nb * 4 + q) * 2
            a = acc(nb, 0) + 4 * q
            e(f"v_lshlrev_b32 v{a}, 16, v{b}")
            e(f"v_and_b32 v{a+1}, s42, v{b}")
            e(f"v_lshlrev_b32 v{a+2}, 16, v{b+1}")
            e(f"v_and_b32 v{a+3}, s42, v{b+1}")
    for nb in range(2):
        for mb in range(1, 4):
            for r in range(16):
                e(f"v_mov_b32 v{acc(nb,mb)+r}, v{acc(nb,0)+r}")
    e("s_waitcnt lgkmcnt(0)")
    for r in range(FR + 24, FR + 48):
        e(f"v_mov_b32 v{r}, 0")
    e("s_mov_b32 s31, 0")
    e("s_mov_b32 s44, 0")
    e(f"s_mov_b32 s45, {2*A_STAGE}")
    e("s_waitcnt lgkmcnt(0)")
    stamp()
    e("s_barrier")
    stamp()
    lab("L_cloop")
    d = a_dma()
    pre = ["s_cmp_lt_u32 s31, 14", f"s_cselect_b32 s{S_X+2}, s37, 0", "s_add_u32 s34, s47, s45"]
    kstep(cons_mfmas(1), cons_reads(0, 0), {3: pre, 4: d[0], 6: d[1]})
    e("s_waitcnt lgkmcnt(0)")
    kstep(cons_mfmas(0), cons_reads(1, 1), {4: d[2], 6: d[3]})
    e("s_waitcnt lgkmcnt(0)")
    adv = [f"s_add_u32 s44, s44, {B_SLOT}", f"s_cmp_eq_u32 s44, {3*B_SLOT}", "s_cselect_b32 s44, 0, s44",
           "s_lshl_b32 s46, s44, 1",
           f"s_add_u32 s45, s45, {A_STAGE}", f"s_cmp_eq_u32 s45, {3*A_STAGE}", "s_cselect_b32 s45, 0, s45"]
    kstep(cons_mfmas(1), cons_reads(2, 0), {4: d[4], 5: adv[:4], 6: d[5], 7: adv[4:]})
    e("s_waitcnt lgkmcnt(0)")
    upd = [f"v_add_u32 v{V_XRD+s}, s46, v{V_XRD+4+s}" for s in range(4)] + \
          [f"v_add_u32 v{V_WRD+nb}, s44, v{V_WRD+2+nb}" for nb in range(2)]
    kstep(cons_mfmas(0), cons_reads(3, 1), {4: d[6] + upd[:3], 5: upd[3:], 6: d[7] + adv_a(), 7: ["s_add_u32 s31, s31, 1", "s_cmp_lt_u32 s31, 16"]})
    e("s_cbranch_scc1 L_cnodrain")
    e("s_waitcnt vmcnt(0)")
    lab("L_cnodrain")
    e("s_waitcnt vmcnt(8) lgkmcnt(0)")
    stamp()
    e("s_barrier")
    stamp2()
    e("s_cbranch_scc1 L_cloop")
    mf = cons_mfmas(1)
    blocks = [(nb, mb) for nb in range(2) for mb in range(4)]
    def conv(bi):
        nb, mb = blocks[bi]
        a = acc(nb, mb)
        t = V_T if (bi & 1) == 0 else V_T + 8
        for j in range(8):
            e(f"v_cvt_pk_bf16_f32 v{t+j}, v{a+2*j}, v{a+2*j+1}")
        e("s_nop 1")
        for qq in range(2):
            b = t + qq * 4
            e(f"v_permlane32_swap_b32 v{b}, v{b+2}")
            e(f"v_permlane32_swap_b32 v{b+1}, v{b+3}")
        for qq in range(2):
            b = t + qq * 4
            e(f"ds_write_b128 v{V_EW+nb*2+qq}, v[{b}:{b+3}] offset:{mb*8192}")
    for i, m in enumerate(mf):
        e(m)
        if i == 2:
            e("s_nop 9")
        if i >= 2:
            conv(i - 2)
    e("s_nop 15")
    conv(6)
    e("s_nop 7")
    conv(7)
    stamp()
    e("s_waitcnt lgkmcnt(0)")
    e("s_branch L_store")

    lab("L_producer")
    adv_b()
    emit_groups(b_loads(2)); adv_b()
    emit_groups(b_loads(3)); adv_b()
    for i in range(4):
        e(f"v_subrev_u32 v{4+i}, {B_SLOT}, v{26+i}")
    e("s_waitcnt vmcnt(8)")
    lab("L_prune0")
    for x in prune_ops(1): e(x)
    for i in range(4):
        b = BST + 16 + i * 4
        e(f"ds_write_b128 v{26+i}, v[{b}:{b+3}]")
    e("s_cmp_lt_u32 s3, 4")
    e("s_cbranch_scc1 L_cons2")
    e("s_mov_b32 s30, 0")
    e("s_mov_b32 s31, 0")
    e(f"s_mov_b32 s44, {2*B_SLOT}")
    stamp()
    e("s_barrier")
    stamp()
    lab("L_ploop")
    for u in range(4):
        e("s_cmp_lt_u32 s31, 12")
        e(f"s_cselect_b32 s{S_W+2}, s38, 0")
        e("s_add_u32 s31, s31, 1")
        for i in range(4):
            e(f"v_add_u32 v{14+i}, s44, v{4+i}")
        e(f"s_add_u32 s44, s44, {B_SLOT}")
        e(f"s_cmp_eq_u32 s44, {3*B_SLOT}")
        e("s_cselect_b32 s44, 0, s44")
        e("s_waitcnt vmcnt(4)")
        q = (u + 2) & 3
        for x in merge(prune_ops(q), b_loads(u)): e(x)
        b_writes(q, 0)
        adv_b()
        if u == 3:
            e("s_add_u32 s30, s30, 1")
            e("s_cmp_lt_u32 s30, 4")
        if STAMP and "pstamp" in FLAGS:
            e("s_waitcnt lgkmcnt(4)")
            e("s_memtime s[50:51]")
            e("s_waitcnt lgkmcnt(0)")
            e("v_mov_b32 v30, s50")
            e("buffer_store_dword v30, v31, s[52:55], 0 offen")
            e("v_add_u32 v31, 4, v31")
        else:
            e("s_waitcnt lgkmcnt(4)")
        e("s_barrier")
        if "pstamp" in FLAGS: stamp2()
    e("s_cbranch_scc1 L_ploop")

    lab("L_store")
    e("s_waitcnt vmcnt(0)")
    e("v_lshrrev_b32 v16, 4, v2")
    e("v_and_b32 v17, 15, v2")
    e("s_lshl_b32 s40, s39, 5")
    e("v_add_u32 v18, s40, v16")
    e("v_xor_b32 v19, v17, v16")
    e("v_xor_b32 v20, 4, v19")
    e("v_lshlrev_b32 v21, 8, v18")
    e(f"v_add_u32 v21, {A_BASE}, v21")
    e("v_lshl_add_u32 v19, v19, 4, v21")
    e("v_lshl_add_u32 v20, v20, 4, v21")
    e("s_lshl_b32 s41, s32, 8")
    e("v_add_u32 v18, s41, v18")
    e("v_lshlrev_b32 v18, 11, v18")
    e("s_lshl_b32 s41, s33, 8")
    e("v_lshl_add_u32 v21, v17, 4, s41")
    e("v_add_u32 v18, v18, v21")
    e("s_waitcnt lgkmcnt(0)")
    e("s_barrier")
    for j in range(8):
        va = 19 if (j & 1) == 0 else 20
        e(f"ds_read_b128 v[{32+4*j}:{35+4*j}], v{va} offset:{j*1024}")
    for j in range(8):
        e(f"s_mov_b32 s42, {j*8192}")
        e(f"s_waitcnt lgkmcnt({7-j})")
        e(f"buffer_store_dwordx4 v[{32+4*j}:{35+4*j}], v18, s[{S_O}:{S_O+3}], s42 offen")
    stamp()
    if STAMP:
        e("s_waitcnt vmcnt(0)")
        stamp()
        rstamp()
    lab("L_end")
    e("s_endpgm")
    return HEADER.format(k=KNAME, lds=LDS_BYTES) + "\n".join(out) + "\n" + FOOTER.format(k=KNAME, nv=256, ao=256)

if __name__ == "__main__":
    path = sys.argv[1] if len(sys.argv) > 1 else "standalone__structured_sparse_n_m__ragged.s"
    for a in sys.argv[2:]:
        if a == "stamp": STAMP = True
        else: FLAGS.add(a)
    open(path, "w").write(gen())
    print("wrote", path)
```

```python
import sys

KNAME = "standalone__structured_sparse_n_m__ragged_kernel"
LDS_BYTES = 147456

HEADER = """; Kernarg layout for this problem (48 bytes, ptrs only, base s[0:1]):
; @launch grid=(256,1,1) block=(512,1,1) lds={lds}
.amdgcn_target "amdgcn-amd-amdhsa--gfx950"
.text
.globl {k}
.p2align 8
.type {k},@function
{k}:
"""

FOOTER = """
.section .rodata,"a"
.p2align 6
.amdhsa_kernel {k}
  .amdhsa_next_free_vgpr {nv}
  .amdhsa_next_free_sgpr 64
  .amdhsa_accum_offset {ao}
  .amdhsa_group_segment_fixed_size 0
  .amdhsa_kernarg_size 48
  .amdhsa_user_sgpr_count 2
  .amdhsa_user_sgpr_kernarg_segment_ptr 1
  .amdhsa_system_sgpr_workgroup_id_x 1
.end_amdhsa_kernel
"""

A_BASE = 49152
A_STAGE = 32768
B_SLOT = 16384
S_X, S_W, S_B, S_O = 12, 16, 20, 24

STAMP = False
FLAGS = set()
out = []
def NT(f):
    return " nt" if f in FLAGS else ""
def e(s):
    out.append("  " + s)
def lab(s):
    out.append(s + ":")

def _st(off):
    e("s_memtime s[50:51]")
    e("s_waitcnt lgkmcnt(0)")
    e("v_mov_b32 v30, s50")
    e(f"buffer_store_dword v30, v31, s[52:55], 0 offen offset:{off}")
def stamp():
    if not STAMP: return
    _st(0)
    e("v_add_u32 v31, 4, v31")
def stamp2():
    if "stamp2" not in FLAGS: return
    _st(124)
def rstamp():
    if not STAMP: return
    e("s_memrealtime s[50:51]")
    e("s_waitcnt lgkmcnt(0)")
    e("v_mov_b32 v30, s50")
    e("buffer_store_dword v30, v31, s[52:55], 0 offen offset:256")

ACC = 128
def acc(nb, mb):
    return ACC + (nb * 4 + mb) * 16
def accr(nb, mb):
    b = acc(nb, mb)
    return f"v[{b}:{b+15}]"
FR = 32
def xfrag(p, mb):
    return FR + p * 24 + mb * 4
def wfrag(p, nb):
    return FR + p * 24 + 16 + nb * 4
V_XRD = 4
V_WRD = 12
V_EW = 96
V_T = 100
V_DMA = 116

def cons_reads(s, p):
    r = []
    def wr(nb):
        b = wfrag(p, nb)
        for j2 in range(2):
            off = (16 * s + 4 * j2) * 256
            r.append(f"ds_read_b64_tr_b16 v[{b+2*j2}:{b+2*j2+1}], v{V_WRD+nb} offset:{off}")
    def xr(mb):
        b = xfrag(p, mb)
        off = mb * 4096
        r.append(f"ds_read_b128 v[{b}:{b+3}], v{V_XRD + s} offset:{off}")
    wr(0)
    for mb in range(4):
        xr(mb)
    wr(1)
    return r

def cons_mfmas(p):
    r = []
    for nb in range(2):
        for mb in range(4):
            w = wfrag(p, nb); x = xfrag(p, mb)
            r.append(f"v_mfma_f32_32x32x16_bf16 {accr(nb,mb)}, v[{w}:{w+3}], v[{x}:{x+3}], {accr(nb,mb)}")
    return r

def a_dma():
    r = []
    for half in range(2):
        for i4 in range(4):
            i = half * 4 + i4
            g = []
            if i4 == 0:
                g.append(f"s_add_u32 m0, s34, {half*4096}")
                g.append("s_nop 0")
            g.append(f"buffer_load_dwordx4 v{V_DMA+i}, s[{S_X}:{S_X+3}], s28 offen offset:{i4*1024}{NT('ntx')} lds")
            r.append(g)
    return r

def kstep(mf, reads, extra):
    fi = 0
    for i, m in enumerate(mf):
        e(m)
        for _ in range(2):
            if fi < len(reads):
                e(reads[fi]); fi += 1
        for x in extra.get(i, []): e(x)

def merge(main, side):
    res = []
    n = len(side)
    if n == 0:
        return list(main)
    L = len(main)
    si = 0
    for i, m in enumerate(main):
        while si < n and si * L <= i * n:
            res.extend(side[si]); si += 1
        res.append(m)
    while si < n:
        res.extend(side[si]); si += 1
    return res

def gen():
    out.clear()
    e("s_cmp_ge_u32 s2, 256")
    e("s_cbranch_scc1 L_end")
    e("s_load_dwordx8 s[4:11], s[0:1], 0")
    e("v_lshrrev_b32 v1, 6, v0")
    e("v_and_b32 v2, 63, v0")
    e("s_and_b32 s32, s2, 7")
    e("v_readfirstlane_b32 s3, v1")
    e("s_lshr_b32 s33, s2, 3")
    e("s_lshl_b32 s32, s32, 2")
    e("s_lshr_b32 s40, s33, 3")
    e("s_add_u32 s32, s32, s40")
    e("s_and_b32 s33, s33, 7")
    e("s_mov_b32 s37, 0x1000000")
    e("s_mov_b32 s38, 0x200000")
    e("s_mov_b32 s39, s3")
    if "norot" in FLAGS:
        e("s_mov_b32 s28, 0")
    elif "rotn8" in FLAGS:
        e("s_lshl_b32 s28, s33, 8")
    elif "rotn4" in FLAGS:
        e("s_and_b32 s28, s33, 3")
        e("s_lshl_b32 s28, s28, 9")
    elif "rotn2" in FLAGS:
        e("s_and_b32 s28, s33, 1")
        e("s_lshl_b32 s28, s28, 10")
    else:
        e("s_and_b32 s28, s32, 3")
        e("s_lshl_b32 s28, s28, 9")
    e("s_lshl_b32 s29, s28, 10")
    e("s_waitcnt lgkmcnt(0)")
    for (srd, p, sz) in ((S_X, 4, "0x1000000"), (S_W, 6, "0x200000"), (S_B, 8, "0x800"), (S_O, 10, "0x1000000")):
        e(f"s_mov_b32 s{srd}, s{p}")
        e(f"s_and_b32 s{srd+1}, s{p+1}, 0xffff")
        e(f"s_mov_b32 s{srd+2}, {sz}")
        e(f"s_mov_b32 s{srd+3}, 0x00020000")
    if STAMP:
        e("s_load_dwordx2 s[52:53], s[0:1], 40")
        e("s_waitcnt lgkmcnt(0)")
        e("s_and_b32 s53, s53, 0xffff")
        e("s_mov_b32 s54, 0x1000000")
        e("s_mov_b32 s55, 0x00020000")
        e("s_lshl_b32 s56, s2, 3")
        e("s_add_u32 s56, s56, s3")
        e("s_lshl_b32 s56, s56, 10")
        e("v_mov_b32 v31, s56")
        rstamp()
        stamp()
    BST = 48; TP = 32
    def b_loads(q):
        r = []
        for i in range(4):
            b = BST + q * 16 + i * 4
            va = 12 + (i >> 1)
            r.append([f"buffer_load_dwordx4 v[{b}:{b+3}], v{va}, s[{S_W}:{S_W+3}], s29 offen offset:{(i&1)*2048}{NT('ntw')}"])
        return r
    def prune_col(q, d, T):
        w = [BST + q * 16 + i * 4 + d for i in range(4)]
        a = [T + i for i in range(4)]
        r = []
        for i in range(4):
            r.append(f"v_and_b32 v{a[i]}, s35, v{w[i]}")
        r.append(f"v_pk_max_u16 v{T+4}, v{a[0]}, v{a[1]}")
        r.append(f"v_pk_min_u16 v{T+5}, v{a[0]}, v{a[1]}")
        r.append(f"v_pk_max_u16 v{T+6}, v{a[2]}, v{a[3]}")
        r.append(f"v_pk_min_u16 v{T+7}, v{a[2]}, v{a[3]}")
        r.append(f"v_pk_min_u16 v{T+4}, v{T+4}, v{T+6}")
        r.append(f"v_pk_max_u16 v{T+5}, v{T+5}, v{T+7}")
        r.append(f"v_pk_max_u16 v{T+4}, v{T+4}, v{T+5}")
        for i in range(4):
            r.append(f"v_pk_sub_i16 v{a[i]}, v{a[i]}, v{T+4}")
        for i in range(4):
            r.append(f"v_pk_ashrrev_i16 v{a[i]}, s36, v{a[i]}")
        for i in range(4):
            r.append(f"v_bfi_b32 v{w[i]}, v{a[i]}, 0, v{w[i]}")
        return r
    def prune_ops(q):
        r = []
        for dp in range(2):
            c0 = prune_col(q, 2 * dp, TP)
            c1 = prune_col(q, 2 * dp + 1, TP + 8)
            for x, y in zip(c0, c1):
                r.append(x); r.append(y)
        return r
    def b_writes(q, off):
        for i in range(4):
            b = BST + q * 16 + i * 4
            e(f"ds_write_b128 v{14+i}, v[{b}:{b+3}] offset:{off}")
    def emit_groups(gs):
        for g in gs:
            for x in g: e(x)

    e("s_and_b32 s40, s3, 3")
    e("s_lshr_b32 s48, s3, 2")
    e("s_mov_b32 s35, 0x7fff7fff")
    e("s_mov_b32 s36, 0x000f000f")
    e("v_lshrrev_b32 v21, 4, v2")
    e("s_lshl_b32 s40, s40, 2")
    e("v_add_u32 v20, s40, v21")
    e("v_and_b32 v22, 15, v2")
    e("v_lshlrev_b32 v23, 13, v20")
    e("s_lshl_b32 s41, s33, 8")
    e("v_lshl_add_u32 v24, v22, 4, s41")
    e("v_add_u32 v12, v23, v24")
    e("v_add_u32 v13, 0x1000, v12")
    e("s_lshl_b32 s41, s48, 17")
    e("s_add_u32 s29, s29, s41")
    e("s_and_b32 s29, s29, 0x1fffff")
    emit_groups(b_loads(1))
    e("v_lshlrev_b32 v23, 10, v20")
    e("v_and_b32 v24, 3, v22")
    e("v_lshl_add_u32 v23, v24, 4, v23")
    e("s_lshl_b32 s41, s48, 14")
    e("v_add_u32 v23, s41, v23")
    e("v_lshrrev_b32 v24, 2, v22")
    for i in range(4):
        e(f"v_xor_b32 v25, {i}, v24")
        e(f"v_lshl_add_u32 v25, v25, 6, v23")
        e(f"v_add_u32 v{26+i}, {i*256}, v25")
    e("s_lshl_b32 s40, s32, 8")
    e("s_and_b32 s41, s3, 3")
    e("s_lshl_b32 s41, s41, 6")
    e("s_add_u32 s40, s40, s41")
    e("v_lshrrev_b32 v20, 3, v2")
    e("v_add_u32 v20, s40, v20")
    e("v_lshlrev_b32 v20, 11, v20")
    e("v_lshrrev_b32 v21, 4, v2")
    e("v_and_b32 v22, 7, v2")
    e("v_xor_b32 v23, v22, v21")
    e("v_xor_b32 v24, 4, v23")
    e("v_lshl_add_u32 v23, v23, 4, v20")
    e("v_lshl_add_u32 v24, v24, 4, v20")
    for i in range(8):
        src = 23 if (i & 1) == 0 else 24
        add = i * 16384 - (i & 3) * 1024
        e(f"v_add_u32 v{V_DMA+i}, {add}, v{src}")
    e("s_cmp_ge_u32 s3, 4")
    e("s_cbranch_scc1 L_producer")

    def adv_a():
        return ["s_add_u32 s28, s28, 128", "s_and_b32 s28, s28, 2047"]
    def adv_b():
        e("s_add_u32 s29, s29, 0x20000")
        e("s_and_b32 s29, s29, 0x1fffff")

    if "noprio" not in FLAGS:
        e("s_setprio 2")
    e("s_lshl_b32 s47, s3, 13")
    e(f"s_add_u32 s47, s47, {A_BASE}")
    e("s_mov_b32 s34, s47")
    e("s_lshr_b32 s40, s3, 1")
    e("s_and_b32 s41, s3, 1")
    e("v_lshrrev_b32 v3, 5, v2")
    e("s_lshl_b32 s42, s33, 8")
    e("s_lshl_b32 s43, s41, 7")
    e("s_add_u32 s42, s42, s43")
    e("v_lshlrev_b32 v16, 3, v3")
    e("v_add_u32 v16, s42, v16")
    for st in range(2):
        for g in a_dma():
            for x in g: e(x)
        for x in adv_a(): e(x)
        e(f"s_add_u32 s34, s34, {A_STAGE}")
        if st == 0:
            for nb in range(2):
                for q in range(4):
                    b = 80 + (nb * 4 + q) * 2
                    e(f"buffer_load_dwordx2 v[{b}:{b+1}], v16, s[{S_B}:{S_B+3}], 0 offen offset:{nb*64+q*16}")
    e("v_and_b32 v24, 31, v2")
    e("v_bfe_u32 v25, v2, 1, 3")
    e("s_lshl_b32 s42, s40, 14")
    e(f"s_add_u32 s42, s42, {A_BASE}")
    e("v_lshlrev_b32 v17, 7, v24")
    e("v_add_u32 v17, s42, v17")
    for s in range(4):
        e(f"v_add_u32 v18, {2*s}, v3")
        e("v_xor_b32 v18, v18, v25")
        e(f"v_lshl_add_u32 v{V_XRD+4+s}, v18, 4, v17")
        e(f"v_mov_b32 v{V_XRD+s}, v{V_XRD+4+s}")
    e("v_bfe_u32 v18, v2, 2, 2")
    e("v_lshl_add_u32 v19, v3, 3, v18")
    e("v_lshlrev_b32 v19, 8, v19")
    e("v_bfe_u32 v20, v2, 4, 1")
    e("v_lshl_add_u32 v19, v20, 5, v19")
    e("v_and_b32 v20, 3, v2")
    e("v_lshl_add_u32 v19, v20, 3, v19")
    e("s_lshl_b32 s42, s41, 1")
    for nb in range(2):
        e(f"s_add_u32 s43, s42, {nb}")
        e("v_xor_b32 v20, s43, v18")
        e(f"v_lshl_add_u32 v{V_WRD+2+nb}, v20, 6, v19")
        e(f"v_mov_b32 v{V_WRD+nb}, v{V_WRD+2+nb}")
    e("s_lshl_b32 s42, s40, 15")
    e(f"s_add_u32 s42, s42, {A_BASE}")
    e("v_lshlrev_b32 v20, 8, v24")
    e("v_add_u32 v20, s42, v20")
    e("v_and_b32 v21, 7, v2")
    e("s_lshl_b32 s42, s41, 3")
    for nb in range(2):
        for qq in range(2):
            e(f"s_add_u32 s43, s42, {nb*4+qq*2}")
            e("v_add_u32 v22, s43, v3")
            e("v_xor_b32 v22, v22, v21")
            e(f"v_lshl_add_u32 v{V_EW+nb*2+qq}, v22, 4, v20")
    e("s_waitcnt vmcnt(24)")
    e("s_branch L_prune0")
    lab("L_cons2")
    e("s_waitcnt vmcnt(8)")
    e("s_mov_b32 s42, 0xffff0000")
    for nb in range(2):
        for q in range(4):
            b = 80 + (nb * 4 + q) * 2
            a = acc(nb, 0) + 4 * q
            e(f"v_lshlrev_b32 v{a}, 16, v{b}")
            e(f"v_and_b32 v{a+1}, s42, v{b}")
            e(f"v_lshlrev_b32 v{a+2}, 16, v{b+1}")
            e(f"v_and_b32 v{a+3}, s42, v{b+1}")
    for nb in range(2):
        for mb in range(1, 4):
            for r in range(16):
                e(f"v_mov_b32 v{acc(nb,mb)+r}, v{acc(nb,0)+r}")
    e("s_waitcnt lgkmcnt(0)")
    for r in range(FR + 24, FR + 48):
        e(f"v_mov_b32 v{r}, 0")
    e("s_mov_b32 s31, 0")
    e("s_mov_b32 s44, 0")
    e(f"s_mov_b32 s45, {2*A_STAGE}")
    e("s_waitcnt lgkmcnt(0)")
    stamp()
    e("s_barrier")
    stamp()
    lab("L_cloop")
    d = a_dma()
    pre = ["s_cmp_lt_u32 s31, 14", f"s_cselect_b32 s{S_X+2}, s37, 0", "s_add_u32 s34, s47, s45"]
    kstep(cons_mfmas(1), cons_reads(0, 0), {3: pre, 4: d[0], 6: d[1]})
    e("s_waitcnt lgkmcnt(0)")
    kstep(cons_mfmas(0), cons_reads(1, 1), {4: d[2], 6: d[3]})
    e("s_waitcnt lgkmcnt(0)")
    adv = [f"s_add_u32 s44, s44, {B_SLOT}", f"s_cmp_eq_u32 s44, {3*B_SLOT}", "s_cselect_b32 s44, 0, s44",
           "s_lshl_b32 s46, s44, 1",
           f"s_add_u32 s45, s45, {A_STAGE}", f"s_cmp_eq_u32 s45, {3*A_STAGE}", "s_cselect_b32 s45, 0, s45"]
    kstep(cons_mfmas(1), cons_reads(2, 0), {4: d[4], 5: adv[:4], 6: d[5], 7: adv[4:]})
    e("s_waitcnt lgkmcnt(0)")
    upd = [f"v_add_u32 v{V_XRD+s}, s46, v{V_XRD+4+s}" for s in range(4)] + \
          [f"v_add_u32 v{V_WRD+nb}, s44, v{V_WRD+2+nb}" for nb in range(2)]
    kstep(cons_mfmas(0), cons_reads(3, 1), {4: d[6] + upd[:3], 5: upd[3:], 6: d[7] + adv_a(), 7: ["s_add_u32 s31, s31, 1", "s_cmp_lt_u32 s31, 16"]})
    e("s_cbranch_scc1 L_cnodrain")
    e("s_waitcnt vmcnt(0)")
    lab("L_cnodrain")
    e("s_waitcnt vmcnt(8) lgkmcnt(0)")
    stamp()
    e("s_barrier")
    stamp2()
    e("s_cbranch_scc1 L_cloop")
    mf = cons_mfmas(1)
    blocks = [(nb, mb) for nb in range(2) for mb in range(4)]
    def conv(bi):
        nb, mb = blocks[bi]
        a = acc(nb, mb)
        t = V_T if (bi & 1) == 0 else V_T + 8
        for j in range(8):
            e(f"v_cvt_pk_bf16_f32 v{t+j}, v{a+2*j}, v{a+2*j+1}")
        e("s_nop 1")
        for qq in range(2):
            b = t + qq * 4
            e(f"v_permlane32_swap_b32 v{b}, v{b+2}")
            e(f"v_permlane32_swap_b32 v{b+1}, v{b+3}")
        for qq in range(2):
            b = t + qq * 4
            e(f"ds_write_b128 v{V_EW+nb*2+qq}, v[{b}:{b+3}] offset:{mb*8192}")
    for i, m in enumerate(mf):
        e(m)
        if i == 2:
            e("s_nop 9")
        if i >= 2:
            conv(i - 2)
    e("s_nop 15")
    conv(6)
    e("s_nop 7")
    conv(7)
    stamp()
    e("s_waitcnt lgkmcnt(0)")
    e("s_branch L_store")

    lab("L_producer")
    adv_b()
    emit_groups(b_loads(2)); adv_b()
    emit_groups(b_loads(3)); adv_b()
    for i in range(4):
        e(f"v_subrev_u32 v{4+i}, {B_SLOT}, v{26+i}")
    e("s_waitcnt vmcnt(8)")
    lab("L_prune0")
    for x in prune_ops(1): e(x)
    for i in range(4):
        b = BST + 16 + i * 4
        e(f"ds_write_b128 v{26+i}, v[{b}:{b+3}]")
    e("s_cmp_lt_u32 s3, 4")
    e("s_cbranch_scc1 L_cons2")
    e("s_mov_b32 s30, 0")
    e("s_mov_b32 s31, 0")
    e(f"s_mov_b32 s44, {2*B_SLOT}")
    stamp()
    e("s_barrier")
    stamp()
    lab("L_ploop")
    for u in range(4):
        e("s_cmp_lt_u32 s31, 12")
        e(f"s_cselect_b32 s{S_W+2}, s38, 0")
        e("s_add_u32 s31, s31, 1")
        for i in range(4):
            e(f"v_add_u32 v{14+i}, s44, v{4+i}")
        e(f"s_add_u32 s44, s44, {B_SLOT}")
        e(f"s_cmp_eq_u32 s44, {3*B_SLOT}")
        e("s_cselect_b32 s44, 0, s44")
        e("s_waitcnt vmcnt(4)")
        q = (u + 2) & 3
        for x in merge(prune_ops(q), b_loads(u)): e(x)
        b_writes(q, 0)
        adv_b()
        if u == 3:
            e("s_add_u32 s30, s30, 1")
            e("s_cmp_lt_u32 s30, 4")
        if STAMP and "pstamp" in FLAGS:
            e("s_waitcnt lgkmcnt(4)")
            e("s_memtime s[50:51]")
            e("s_waitcnt lgkmcnt(0)")
            e("v_mov_b32 v30, s50")
            e("buffer_store_dword v30, v31, s[52:55], 0 offen")
            e("v_add_u32 v31, 4, v31")
        else:
            e("s_waitcnt lgkmcnt(4)")
        e("s_barrier")
        if "pstamp" in FLAGS: stamp2()
    e("s_cbranch_scc1 L_ploop")

    lab("L_store")
    e("s_waitcnt vmcnt(0)")
    e("v_lshrrev_b32 v16, 4, v2")
    e("v_and_b32 v17, 15, v2")
    e("s_lshl_b32 s40, s39, 5")
    e("v_add_u32 v18, s40, v16")
    e("v_xor_b32 v19, v17, v16")
    e("v_xor_b32 v20, 4, v19")
    e("v_lshlrev_b32 v21, 8, v18")
    e(f"v_add_u32 v21, {A_BASE}, v21")
    e("v_lshl_add_u32 v19, v19, 4, v21")
    e("v_lshl_add_u32 v20, v20, 4, v21")
    e("s_lshl_b32 s41, s32, 8")
    e("v_add_u32 v18, s41, v18")
    e("v_lshlrev_b32 v18, 11, v18")
    e("s_lshl_b32 s41, s33, 8")
    e("v_lshl_add_u32 v21, v17, 4, s41")
    e("v_add_u32 v18, v18, v21")
    e("s_waitcnt lgkmcnt(0)")
    e("s_barrier")
    for j in range(8):
        va = 19 if (j & 1) == 0 else 20
        e(f"ds_read_b128 v[{32+4*j}:{35+4*j}], v{va} offset:{j*1024}")
    for j in range(8):
        e(f"s_mov_b32 s42, {j*8192}")
        e(f"s_waitcnt lgkmcnt({7-j})")
        e(f"buffer_store_dwordx4 v[{32+4*j}:{35+4*j}], v18, s[{S_O}:{S_O+3}], s42 offen{NT('nto')}")
    stamp()
    if STAMP:
        e("s_waitcnt vmcnt(0)")
        stamp()
        rstamp()
    lab("L_end")
    e("s_endpgm")
    return HEADER.format(k=KNAME, lds=LDS_BYTES) + "\n".join(out) + "\n" + FOOTER.format(k=KNAME, nv=256, ao=256)

if __name__ == "__main__":
    path = sys.argv[1] if len(sys.argv) > 1 else "standalone__structured_sparse_n_m__ragged.s"
    for a in sys.argv[2:]:
        if a == "stamp": STAMP = True
        else: FLAGS.add(a)
    open(path, "w").write(gen())
    print("wrote", path)
```

```python
import sys

KNAME = "standalone__structured_sparse_n_m__ragged_kernel"
LDS_BYTES = 147456

HEADER = """; Kernarg layout for this problem (48 bytes, ptrs only, base s[0:1]):
; @launch grid=(256,1,1) block=(512,1,1) lds={lds}
.amdgcn_target "amdgcn-amd-amdhsa--gfx950"
.text
.globl {k}
.p2align 8
.type {k},@function
{k}:
"""

FOOTER = """
.section .rodata,"a"
.p2align 6
.amdhsa_kernel {k}
  .amdhsa_next_free_vgpr {nv}
  .amdhsa_next_free_sgpr 64
  .amdhsa_accum_offset {ao}
  .amdhsa_group_segment_fixed_size 0
  .amdhsa_kernarg_size 48
  .amdhsa_user_sgpr_count 2
  .amdhsa_user_sgpr_kernarg_segment_ptr 1
  .amdhsa_system_sgpr_workgroup_id_x 1
.end_amdhsa_kernel
"""

A_BASE = 49152
A_STAGE = 32768
B_SLOT = 16384
S_X, S_W, S_B, S_O = 12, 16, 20, 24

STAMP = False
FLAGS = set()
out = []
def NT(f):
    if f == "nto":
        for k, v in (("o_nt", " nt"), ("o_sc1", " sc1"), ("o_sc01", " sc0 sc1"), ("o_sc1nt", " sc1 nt"), ("o_sc01nt", " sc0 sc1 nt"), ("nto", " nt")):
            if k in FLAGS: return v
        return ""
    return " nt" if f in FLAGS else ""
def e(s):
    out.append("  " + s)
def lab(s):
    out.append(s + ":")

def _st(off):
    e("s_memtime s[50:51]")
    e("s_waitcnt lgkmcnt(0)")
    e("v_mov_b32 v30, s50")
    e(f"buffer_store_dword v30, v31, s[52:55], 0 offen offset:{off}")
def stamp():
    if not STAMP: return
    _st(0)
    e("v_add_u32 v31, 4, v31")
def stamp2():
    if "stamp2" not in FLAGS: return
    _st(124)
def rstamp():
    if not STAMP: return
    e("s_memrealtime s[50:51]")
    e("s_waitcnt lgkmcnt(0)")
    e("v_mov_b32 v30, s50")
    e("buffer_store_dword v30, v31, s[52:55], 0 offen offset:256")

ACC = 128
def acc(nb, mb):
    return ACC + (nb * 4 + mb) * 16
def accr(nb, mb):
    b = acc(nb, mb)
    return f"v[{b}:{b+15}]"
FR = 32
def xfrag(p, mb):
    return FR + p * 24 + mb * 4
def wfrag(p, nb):
    return FR + p * 24 + 16 + nb * 4
V_XRD = 4
V_WRD = 12
V_EW = 96
V_T = 100
V_DMA = 116

def cons_reads(s, p):
    r = []
    def wr(nb):
        b = wfrag(p, nb)
        for j2 in range(2):
            off = (16 * s + 4 * j2) * 256
            r.append(f"ds_read_b64_tr_b16 v[{b+2*j2}:{b+2*j2+1}], v{V_WRD+nb} offset:{off}")
    def xr(mb):
        b = xfrag(p, mb)
        off = mb * 4096
        r.append(f"ds_read_b128 v[{b}:{b+3}], v{V_XRD + s} offset:{off}")
    wr(0)
    for mb in range(4):
        xr(mb)
    wr(1)
    return r

def cons_mfmas(p):
    r = []
    for nb in range(2):
        for mb in range(4):
            w = wfrag(p, nb); x = xfrag(p, mb)
            r.append(f"v_mfma_f32_32x32x16_bf16 {accr(nb,mb)}, v[{w}:{w+3}], v[{x}:{x+3}], {accr(nb,mb)}")
    return r

def a_dma():
    r = []
    for half in range(2):
        for i4 in range(4):
            i = half * 4 + i4
            g = []
            if i4 == 0:
                g.append(f"s_add_u32 m0, s34, {half*4096}")
                g.append("s_nop 0")
            g.append(f"buffer_load_dwordx4 v{V_DMA+i}, s[{S_X}:{S_X+3}], s28 offen offset:{i4*1024}{NT('ntx')} lds")
            r.append(g)
    return r

def kstep(mf, reads, extra):
    fi = 0
    for i, m in enumerate(mf):
        e(m)
        for _ in range(2):
            if fi < len(reads):
                e(reads[fi]); fi += 1
        for x in extra.get(i, []): e(x)

def merge(main, side):
    res = []
    n = len(side)
    if n == 0:
        return list(main)
    L = len(main)
    si = 0
    for i, m in enumerate(main):
        while si < n and si * L <= i * n:
            res.extend(side[si]); si += 1
        res.append(m)
    while si < n:
        res.extend(side[si]); si += 1
    return res

def gen():
    out.clear()
    e("s_cmp_ge_u32 s2, 256")
    e("s_cbranch_scc1 L_end")
    e("s_load_dwordx8 s[4:11], s[0:1], 0")
    e("v_lshrrev_b32 v1, 6, v0")
    e("v_and_b32 v2, 63, v0")
    e("s_and_b32 s32, s2, 7")
    e("v_readfirstlane_b32 s3, v1")
    e("s_lshr_b32 s33, s2, 3")
    e("s_lshl_b32 s32, s32, 2")
    e("s_lshr_b32 s40, s33, 3")
    e("s_add_u32 s32, s32, s40")
    e("s_and_b32 s33, s33, 7")
    e("s_mov_b32 s37, 0x1000000")
    e("s_mov_b32 s38, 0x200000")
    e("s_mov_b32 s39, s3")
    if "norot" in FLAGS:
        e("s_mov_b32 s28, 0")
    elif "rotn8" in FLAGS:
        e("s_lshl_b32 s28, s33, 8")
    elif "rotn4" in FLAGS:
        e("s_and_b32 s28, s33, 3")
        e("s_lshl_b32 s28, s28, 9")
    elif "rotn2" in FLAGS:
        e("s_and_b32 s28, s33, 1")
        e("s_lshl_b32 s28, s28, 10")
    else:
        e("s_and_b32 s28, s32, 3")
        e("s_lshl_b32 s28, s28, 9")
    e("s_lshl_b32 s29, s28, 10")
    e("s_waitcnt lgkmcnt(0)")
    for (srd, p, sz) in ((S_X, 4, "0x1000000"), (S_W, 6, "0x200000"), (S_B, 8, "0x800"), (S_O, 10, "0x1000000")):
        e(f"s_mov_b32 s{srd}, s{p}")
        e(f"s_and_b32 s{srd+1}, s{p+1}, 0xffff")
        e(f"s_mov_b32 s{srd+2}, {sz}")
        e(f"s_mov_b32 s{srd+3}, 0x00020000")
    if STAMP:
        e("s_load_dwordx2 s[52:53], s[0:1], 40")
        e("s_waitcnt lgkmcnt(0)")
        e("s_and_b32 s53, s53, 0xffff")
        e("s_mov_b32 s54, 0x1000000")
        e("s_mov_b32 s55, 0x00020000")
        e("s_lshl_b32 s56, s2, 3")
        e("s_add_u32 s56, s56, s3")
        e("s_lshl_b32 s56, s56, 10")
        e("v_mov_b32 v31, s56")
        rstamp()
        stamp()
    BST = 48; TP = 32
    def b_loads(q):
        r = []
        for i in range(4):
            b = BST + q * 16 + i * 4
            va = 12 + (i >> 1)
            r.append([f"buffer_load_dwordx4 v[{b}:{b+3}], v{va}, s[{S_W}:{S_W+3}], s29 offen offset:{(i&1)*2048}{NT('ntw')}"])
        return r
    def prune_col(q, d, T):
        w = [BST + q * 16 + i * 4 + d for i in range(4)]
        a = [T + i for i in range(4)]
        r = []
        for i in range(4):
            r.append(f"v_and_b32 v{a[i]}, s35, v{w[i]}")
        r.append(f"v_pk_max_u16 v{T+4}, v{a[0]}, v{a[1]}")
        r.append(f"v_pk_min_u16 v{T+5}, v{a[0]}, v{a[1]}")
        r.append(f"v_pk_max_u16 v{T+6}, v{a[2]}, v{a[3]}")
        r.append(f"v_pk_min_u16 v{T+7}, v{a[2]}, v{a[3]}")
        r.append(f"v_pk_min_u16 v{T+4}, v{T+4}, v{T+6}")
        r.append(f"v_pk_max_u16 v{T+5}, v{T+5}, v{T+7}")
        r.append(f"v_pk_max_u16 v{T+4}, v{T+4}, v{T+5}")
        for i in range(4):
            r.append(f"v_pk_sub_i16 v{a[i]}, v{a[i]}, v{T+4}")
        for i in range(4):
            r.append(f"v_pk_ashrrev_i16 v{a[i]}, s36, v{a[i]}")
        for i in range(4):
            r.append(f"v_bfi_b32 v{w[i]}, v{a[i]}, 0, v{w[i]}")
        return r
    def prune_ops(q):
        r = []
        for dp in range(2):
            c0 = prune_col(q, 2 * dp, TP)
            c1 = prune_col(q, 2 * dp + 1, TP + 8)
            for x, y in zip(c0, c1):
                r.append(x); r.append(y)
        return r
    def b_writes(q, off):
        for i in range(4):
            b = BST + q * 16 + i * 4
            e(f"ds_write_b128 v{14+i}, v[{b}:{b+3}] offset:{off}")
    def emit_groups(gs):
        for g in gs:
            for x in g: e(x)

    e("s_and_b32 s40, s3, 3")
    e("s_lshr_b32 s48, s3, 2")
    e("s_mov_b32 s35, 0x7fff7fff")
    e("s_mov_b32 s36, 0x000f000f")
    e("v_lshrrev_b32 v21, 4, v2")
    e("s_lshl_b32 s40, s40, 2")
    e("v_add_u32 v20, s40, v21")
    e("v_and_b32 v22, 15, v2")
    e("v_lshlrev_b32 v23, 13, v20")
    e("s_lshl_b32 s41, s33, 8")
    e("v_lshl_add_u32 v24, v22, 4, s41")
    e("v_add_u32 v12, v23, v24")
    e("v_add_u32 v13, 0x1000, v12")
    e("s_lshl_b32 s41, s48, 17")
    e("s_add_u32 s29, s29, s41")
    e("s_and_b32 s29, s29, 0x1fffff")
    emit_groups(b_loads(1))
    e("v_lshlrev_b32 v23, 10, v20")
    e("v_and_b32 v24, 3, v22")
    e("v_lshl_add_u32 v23, v24, 4, v23")
    e("s_lshl_b32 s41, s48, 14")
    e("v_add_u32 v23, s41, v23")
    e("v_lshrrev_b32 v24, 2, v22")
    for i in range(4):
        e(f"v_xor_b32 v25, {i}, v24")
        e(f"v_lshl_add_u32 v25, v25, 6, v23")
        e(f"v_add_u32 v{26+i}, {i*256}, v25")
    e("s_lshl_b32 s40, s32, 8")
    e("s_and_b32 s41, s3, 3")
    e("s_lshl_b32 s41, s41, 6")
    e("s_add_u32 s40, s40, s41")
    e("v_lshrrev_b32 v20, 3, v2")
    e("v_add_u32 v20, s40, v20")
    e("v_lshlrev_b32 v20, 11, v20")
    e("v_lshrrev_b32 v21, 4, v2")
    e("v_and_b32 v22, 7, v2")
    e("v_xor_b32 v23, v22, v21")
    e("v_xor_b32 v24, 4, v23")
    e("v_lshl_add_u32 v23, v23, 4, v20")
    e("v_lshl_add_u32 v24, v24, 4, v20")
    for i in range(8):
        src = 23 if (i & 1) == 0 else 24
        add = i * 16384 - (i & 3) * 1024
        e(f"v_add_u32 v{V_DMA+i}, {add}, v{src}")
    e("s_cmp_ge_u32 s3, 4")
    e("s_cbranch_scc1 L_producer")

    def adv_a():
        return ["s_add_u32 s28, s28, 128", "s_and_b32 s28, s28, 2047"]
    def adv_b():
        e("s_add_u32 s29, s29, 0x20000")
        e("s_and_b32 s29, s29, 0x1fffff")

    if "noprio" not in FLAGS:
        e("s_setprio 2")
    e("s_lshl_b32 s47, s3, 13")
    e(f"s_add_u32 s47, s47, {A_BASE}")
    e("s_mov_b32 s34, s47")
    e("s_lshr_b32 s40, s3, 1")
    e("s_and_b32 s41, s3, 1")
    e("v_lshrrev_b32 v3, 5, v2")
    e("s_lshl_b32 s42, s33, 8")
    e("s_lshl_b32 s43, s41, 7")
    e("s_add_u32 s42, s42, s43")
    e("v_lshlrev_b32 v16, 3, v3")
    e("v_add_u32 v16, s42, v16")
    for st in range(2):
        for g in a_dma():
            for x in g: e(x)
        for x in adv_a(): e(x)
        e(f"s_add_u32 s34, s34, {A_STAGE}")
        if st == 0:
            for nb in range(2):
                for q in range(4):
                    b = 80 + (nb * 4 + q) * 2
                    e(f"buffer_load_dwordx2 v[{b}:{b+1}], v16, s[{S_B}:{S_B+3}], 0 offen offset:{nb*64+q*16}")
    e("v_and_b32 v24, 31, v2")
    e("v_bfe_u32 v25, v2, 1, 3")
    e("s_lshl_b32 s42, s40, 14")
    e(f"s_add_u32 s42, s42, {A_BASE}")
    e("v_lshlrev_b32 v17, 7, v24")
    e("v_add_u32 v17, s42, v17")
    for s in range(4):
        e(f"v_add_u32 v18, {2*s}, v3")
        e("v_xor_b32 v18, v18, v25")
        e(f"v_lshl_add_u32 v{V_XRD+4+s}, v18, 4, v17")
        e(f"v_mov_b32 v{V_XRD+s}, v{V_XRD+4+s}")
    e("v_bfe_u32 v18, v2, 2, 2")
    e("v_lshl_add_u32 v19, v3, 3, v18")
    e("v_lshlrev_b32 v19, 8, v19")
    e("v_bfe_u32 v20, v2, 4, 1")
    e("v_lshl_add_u32 v19, v20, 5, v19")
    e("v_and_b32 v20, 3, v2")
    e("v_lshl_add_u32 v19, v20, 3, v19")
    e("s_lshl_b32 s42, s41, 1")
    for nb in range(2):
        e(f"s_add_u32 s43, s42, {nb}")
        e("v_xor_b32 v20, s43, v18")
        e(f"v_lshl_add_u32 v{V_WRD+2+nb}, v20, 6, v19")
        e(f"v_mov_b32 v{V_WRD+nb}, v{V_WRD+2+nb}")
    e("s_lshl_b32 s42, s40, 15")
    e(f"s_add_u32 s42, s42, {A_BASE}")
    e("v_lshlrev_b32 v20, 8, v24")
    e("v_add_u32 v20, s42, v20")
    e("v_and_b32 v21, 7, v2")
    e("s_lshl_b32 s42, s41, 3")
    for nb in range(2):
        for qq in range(2):
            e(f"s_add_u32 s43, s42, {nb*4+qq*2}")
            e("v_add_u32 v22, s43, v3")
            e("v_xor_b32 v22, v22, v21")
            e(f"v_lshl_add_u32 v{V_EW+nb*2+qq}, v22, 4, v20")
    e("s_waitcnt vmcnt(24)")
    e("s_branch L_prune0")
    lab("L_cons2")
    e("s_waitcnt vmcnt(8)")
    e("s_mov_b32 s42, 0xffff0000")
    for nb in range(2):
        for q in range(4):
            b = 80 + (nb * 4 + q) * 2
            a = acc(nb, 0) + 4 * q
            e(f"v_lshlrev_b32 v{a}, 16, v{b}")
            e(f"v_and_b32 v{a+1}, s42, v{b}")
            e(f"v_lshlrev_b32 v{a+2}, 16, v{b+1}")
            e(f"v_and_b32 v{a+3}, s42, v{b+1}")
    for nb in range(2):
        for mb in range(1, 4):
            for r in range(16):
                e(f"v_mov_b32 v{acc(nb,mb)+r}, v{acc(nb,0)+r}")
    e("s_waitcnt lgkmcnt(0)")
    for r in range(FR + 24, FR + 48):
        e(f"v_mov_b32 v{r}, 0")
    e("s_mov_b32 s31, 0")
    e("s_mov_b32 s44, 0")
    e(f"s_mov_b32 s45, {2*A_STAGE}")
    e("s_waitcnt lgkmcnt(0)")
    stamp()
    e("s_barrier")
    stamp()
    lab("L_cloop")
    d = a_dma()
    pre = ["s_cmp_lt_u32 s31, 14", f"s_cselect_b32 s{S_X+2}, s37, 0", "s_add_u32 s34, s47, s45"]
    kstep(cons_mfmas(1), cons_reads(0, 0), {3: pre, 4: d[0], 6: d[1]})
    e("s_waitcnt lgkmcnt(0)")
    kstep(cons_mfmas(0), cons_reads(1, 1), {4: d[2], 6: d[3]})
    e("s_waitcnt lgkmcnt(0)")
    adv = [f"s_add_u32 s44, s44, {B_SLOT}", f"s_cmp_eq_u32 s44, {3*B_SLOT}", "s_cselect_b32 s44, 0, s44",
           "s_lshl_b32 s46, s44, 1",
           f"s_add_u32 s45, s45, {A_STAGE}", f"s_cmp_eq_u32 s45, {3*A_STAGE}", "s_cselect_b32 s45, 0, s45"]
    kstep(cons_mfmas(1), cons_reads(2, 0), {4: d[4], 5: adv[:4], 6: d[5], 7: adv[4:]})
    e("s_waitcnt lgkmcnt(0)")
    upd = [f"v_add_u32 v{V_XRD+s}, s46, v{V_XRD+4+s}" for s in range(4)] + \
          [f"v_add_u32 v{V_WRD+nb}, s44, v{V_WRD+2+nb}" for nb in range(2)]
    kstep(cons_mfmas(0), cons_reads(3, 1), {4: d[6] + upd[:3], 5: upd[3:], 6: d[7] + adv_a(), 7: ["s_add_u32 s31, s31, 1", "s_cmp_lt_u32 s31, 16"]})
    e("s_cbranch_scc1 L_cnodrain")
    e("s_waitcnt vmcnt(0)")
    lab("L_cnodrain")
    e("s_waitcnt vmcnt(8) lgkmcnt(0)")
    stamp()
    e("s_barrier")
    stamp2()
    e("s_cbranch_scc1 L_cloop")
    mf = cons_mfmas(1)
    blocks = [(nb, mb) for nb in range(2) for mb in range(4)]
    def conv(bi):
        nb, mb = blocks[bi]
        a = acc(nb, mb)
        t = V_T if (bi & 1) == 0 else V_T + 8
        for j in range(8):
            e(f"v_cvt_pk_bf16_f32 v{t+j}, v{a+2*j}, v{a+2*j+1}")
        e("s_nop 1")
        for qq in range(2):
            b = t + qq * 4
            e(f"v_permlane32_swap_b32 v{b}, v{b+2}")
            e(f"v_permlane32_swap_b32 v{b+1}, v{b+3}")
        for qq in range(2):
            b = t + qq * 4
            e(f"ds_write_b128 v{V_EW+nb*2+qq}, v[{b}:{b+3}] offset:{mb*8192}")
    for i, m in enumerate(mf):
        e(m)
        if i == 2:
            e("s_nop 9")
        if i >= 2:
            conv(i - 2)
    e("s_nop 15")
    conv(6)
    e("s_nop 7")
    conv(7)
    stamp()
    e("s_waitcnt lgkmcnt(0)")
    e("s_branch L_store")

    lab("L_producer")
    adv_b()
    emit_groups(b_loads(2)); adv_b()
    emit_groups(b_loads(3)); adv_b()
    for i in range(4):
        e(f"v_subrev_u32 v{4+i}, {B_SLOT}, v{26+i}")
    e("s_waitcnt vmcnt(8)")
    lab("L_prune0")
    for x in prune_ops(1): e(x)
    for i in range(4):
        b = BST + 16 + i * 4
        e(f"ds_write_b128 v{26+i}, v[{b}:{b+3}]")
    e("s_cmp_lt_u32 s3, 4")
    e("s_cbranch_scc1 L_cons2")
    e("s_mov_b32 s30, 0")
    e("s_mov_b32 s31, 0")
    e(f"s_mov_b32 s44, {2*B_SLOT}")
    stamp()
    e("s_barrier")
    stamp()
    lab("L_ploop")
    for u in range(4):
        e("s_cmp_lt_u32 s31, 12")
        e(f"s_cselect_b32 s{S_W+2}, s38, 0")
        e("s_add_u32 s31, s31, 1")
        for i in range(4):
            e(f"v_add_u32 v{14+i}, s44, v{4+i}")
        e(f"s_add_u32 s44, s44, {B_SLOT}")
        e(f"s_cmp_eq_u32 s44, {3*B_SLOT}")
        e("s_cselect_b32 s44, 0, s44")
        e("s_waitcnt vmcnt(4)")
        q = (u + 2) & 3
        for x in merge(prune_ops(q), b_loads(u)): e(x)
        b_writes(q, 0)
        adv_b()
        if u == 3:
            e("s_add_u32 s30, s30, 1")
            e("s_cmp_lt_u32 s30, 4")
        if STAMP and "pstamp" in FLAGS:
            e("s_waitcnt lgkmcnt(4)")
            e("s_memtime s[50:51]")
            e("s_waitcnt lgkmcnt(0)")
            e("v_mov_b32 v30, s50")
            e("buffer_store_dword v30, v31, s[52:55], 0 offen")
            e("v_add_u32 v31, 4, v31")
        else:
            e("s_waitcnt lgkmcnt(4)")
        e("s_barrier")
        if "pstamp" in FLAGS: stamp2()
    e("s_cbranch_scc1 L_ploop")

    lab("L_store")
    e("s_waitcnt vmcnt(0)")
    e("v_lshrrev_b32 v16, 4, v2")
    e("v_and_b32 v17, 15, v2")
    e("s_lshl_b32 s40, s39, 5")
    e("v_add_u32 v18, s40, v16")
    e("v_xor_b32 v19, v17, v16")
    e("v_xor_b32 v20, 4, v19")
    e("v_lshlrev_b32 v21, 8, v18")
    e(f"v_add_u32 v21, {A_BASE}, v21")
    e("v_lshl_add_u32 v19, v19, 4, v21")
    e("v_lshl_add_u32 v20, v20, 4, v21")
    e("s_lshl_b32 s41, s32, 8")
    e("v_add_u32 v18, s41, v18")
    e("v_lshlrev_b32 v18, 11, v18")
    e("s_lshl_b32 s41, s33, 8")
    e("v_lshl_add_u32 v21, v17, 4, s41")
    e("v_add_u32 v18, v18, v21")
    e("s_waitcnt lgkmcnt(0)")
    e("s_barrier")
    for j in range(8):
        va = 19 if (j & 1) == 0 else 20
        e(f"ds_read_b128 v[{32+4*j}:{35+4*j}], v{va} offset:{j*1024}")
    for j in range(8):
        e(f"s_mov_b32 s42, {j*8192}")
        e(f"s_waitcnt lgkmcnt({7-j})")
        e(f"buffer_store_dwordx4 v[{32+4*j}:{35+4*j}], v18, s[{S_O}:{S_O+3}], s42 offen{NT('nto')}")
    stamp()
    if STAMP:
        e("s_waitcnt vmcnt(0)")
        stamp()
        rstamp()
    lab("L_end")
    e("s_endpgm")
    return HEADER.format(k=KNAME, lds=LDS_BYTES) + "\n".join(out) + "\n" + FOOTER.format(k=KNAME, nv=256, ao=256)

if __name__ == "__main__":
    path = sys.argv[1] if len(sys.argv) > 1 else "standalone__structured_sparse_n_m__ragged.s"
    for a in sys.argv[2:]:
        if a == "stamp": STAMP = True
        else: FLAGS.add(a)
    open(path, "w").write(gen())
    print("wrote", path)
```

```python
import sys

KNAME = "standalone__structured_sparse_n_m__ragged_kernel"
LDS_BYTES = 147456

HEADER = """; Kernarg layout for this problem (48 bytes, ptrs only, base s[0:1]):
; @launch grid=(256,1,1) block=(512,1,1) lds={lds}
.amdgcn_target "amdgcn-amd-amdhsa--gfx950"
.text
.globl {k}
.p2align 8
.type {k},@function
{k}:
"""

FOOTER = """
.section .rodata,"a"
.p2align 6
.amdhsa_kernel {k}
  .amdhsa_next_free_vgpr {nv}
  .amdhsa_next_free_sgpr 64
  .amdhsa_accum_offset {ao}
  .amdhsa_group_segment_fixed_size 0
  .amdhsa_kernarg_size 48
  .amdhsa_user_sgpr_count 2
  .amdhsa_user_sgpr_kernarg_segment_ptr 1
  .amdhsa_system_sgpr_workgroup_id_x 1
.end_amdhsa_kernel
"""

A_BASE = 49152
A_STAGE = 32768
B_SLOT = 16384
S_X, S_W, S_B, S_O = 12, 16, 20, 24

STAMP = False
FLAGS = set()
out = []
def NT(f):
    if f == "nto":
        for k, v in (("o_nt", " nt"), ("o_sc1", " sc1"), ("o_sc01", " sc0 sc1"), ("o_sc1nt", " sc1 nt"), ("o_sc01nt", " sc0 sc1 nt"), ("nto", " nt")):
            if k in FLAGS: return v
        return ""
    return " nt" if f in FLAGS else ""
def e(s):
    out.append("  " + s)
def lab(s):
    out.append(s + ":")

def _st(off):
    e("s_memtime s[50:51]")
    e("s_waitcnt lgkmcnt(0)")
    e("v_mov_b32 v30, s50")
    e(f"buffer_store_dword v30, v31, s[52:55], 0 offen offset:{off}")
def stamp():
    if not STAMP: return
    _st(0)
    e("v_add_u32 v31, 4, v31")
def stamp2():
    if "stamp2" not in FLAGS: return
    _st(124)
def rstamp():
    if not STAMP: return
    e("s_memrealtime s[50:51]")
    e("s_waitcnt lgkmcnt(0)")
    e("v_mov_b32 v30, s50")
    e("buffer_store_dword v30, v31, s[52:55], 0 offen offset:256")

ACC = 128
def acc(nb, mb):
    return ACC + (nb * 4 + mb) * 16
def accr(nb, mb):
    b = acc(nb, mb)
    return f"v[{b}:{b+15}]"
FR = 32
def xfrag(p, mb):
    return FR + p * 24 + mb * 4
def wfrag(p, nb):
    return FR + p * 24 + 16 + nb * 4
V_XRD = 4
V_WRD = 12
V_EW = 96
V_T = 100
V_DMA = 116

def cons_reads(s, p):
    r = []
    def wr(nb):
        b = wfrag(p, nb)
        for j2 in range(2):
            off = (16 * s + 4 * j2) * 256
            r.append(f"ds_read_b64_tr_b16 v[{b+2*j2}:{b+2*j2+1}], v{V_WRD+nb} offset:{off}")
    def xr(mb):
        b = xfrag(p, mb)
        off = mb * 4096
        r.append(f"ds_read_b128 v[{b}:{b+3}], v{V_XRD + s} offset:{off}")
    wr(0)
    for mb in range(4):
        xr(mb)
    wr(1)
    return r

def cons_mfmas(p):
    r = []
    for nb in range(2):
        for mb in range(4):
            w = wfrag(p, nb); x = xfrag(p, mb)
            r.append(f"v_mfma_f32_32x32x16_bf16 {accr(nb,mb)}, v[{w}:{w+3}], v[{x}:{x+3}], {accr(nb,mb)}")
    return r

def a_dma():
    r = []
    for half in range(2):
        for i4 in range(4):
            i = half * 4 + i4
            g = []
            if i4 == 0:
                g.append(f"s_add_u32 m0, s34, {half*4096}")
                g.append("s_nop 0")
            g.append(f"buffer_load_dwordx4 v{V_DMA+i}, s[{S_X}:{S_X+3}], s28 offen offset:{i4*1024}{NT('ntx')} lds")
            r.append(g)
    return r

def kstep(mf, reads, extra):
    fi = 0
    for i, m in enumerate(mf):
        e(m)
        for _ in range(2):
            if fi < len(reads):
                e(reads[fi]); fi += 1
        for x in extra.get(i, []): e(x)

def merge(main, side):
    res = []
    n = len(side)
    if n == 0:
        return list(main)
    L = len(main)
    si = 0
    for i, m in enumerate(main):
        while si < n and si * L <= i * n:
            res.extend(side[si]); si += 1
        res.append(m)
    while si < n:
        res.extend(side[si]); si += 1
    return res

def gen():
    out.clear()
    e("s_cmp_ge_u32 s2, 256")
    e("s_cbranch_scc1 L_end")
    e("s_load_dwordx8 s[4:11], s[0:1], 0")
    e("v_lshrrev_b32 v1, 6, v0")
    e("v_and_b32 v2, 63, v0")
    e("s_and_b32 s32, s2, 7")
    e("v_readfirstlane_b32 s3, v1")
    e("s_lshr_b32 s33, s2, 3")
    e("s_lshl_b32 s32, s32, 2")
    e("s_lshr_b32 s40, s33, 3")
    e("s_add_u32 s32, s32, s40")
    e("s_and_b32 s33, s33, 7")
    e("s_mov_b32 s37, 0x1000000")
    e("s_mov_b32 s38, 0x200000")
    e("s_mov_b32 s39, s3")
    if "norot" in FLAGS:
        e("s_mov_b32 s28, 0")
    elif "rotn8" in FLAGS:
        e("s_lshl_b32 s28, s33, 8")
    elif "rotn4" in FLAGS:
        e("s_and_b32 s28, s33, 3")
        e("s_lshl_b32 s28, s28, 9")
    elif "rotn2" in FLAGS:
        e("s_and_b32 s28, s33, 1")
        e("s_lshl_b32 s28, s28, 10")
    else:
        e("s_and_b32 s28, s32, 3")
        e("s_lshl_b32 s28, s28, 9")
    e("s_lshl_b32 s29, s28, 10")
    e("s_waitcnt lgkmcnt(0)")
    for (srd, p, sz) in ((S_X, 4, "0x1000000"), (S_W, 6, "0x200000"), (S_B, 8, "0x800"), (S_O, 10, "0x1000000")):
        e(f"s_mov_b32 s{srd}, s{p}")
        e(f"s_and_b32 s{srd+1}, s{p+1}, 0xffff")
        e(f"s_mov_b32 s{srd+2}, {sz}")
        e(f"s_mov_b32 s{srd+3}, 0x00020000")
    if STAMP:
        e("s_load_dwordx2 s[52:53], s[0:1], 40")
        e("s_waitcnt lgkmcnt(0)")
        e("s_and_b32 s53, s53, 0xffff")
        e("s_mov_b32 s54, 0x1000000")
        e("s_mov_b32 s55, 0x00020000")
        e("s_lshl_b32 s56, s2, 3")
        e("s_add_u32 s56, s56, s3")
        e("s_lshl_b32 s56, s56, 10")
        e("v_mov_b32 v31, s56")
        rstamp()
        stamp()
    BST = 48; TP = 32
    def b_loads(q):
        r = []
        for i in range(4):
            b = BST + q * 16 + i * 4
            va = 12 + (i >> 1)
            r.append([f"buffer_load_dwordx4 v[{b}:{b+3}], v{va}, s[{S_W}:{S_W+3}], s29 offen offset:{(i&1)*2048}{NT('ntw')}"])
        return r
    def prune_col(q, d, T):
        w = [BST + q * 16 + i * 4 + d for i in range(4)]
        a = [T + i for i in range(4)]
        r = []
        for i in range(4):
            r.append(f"v_and_b32 v{a[i]}, s35, v{w[i]}")
        r.append(f"v_pk_max_u16 v{T+4}, v{a[0]}, v{a[1]}")
        r.append(f"v_pk_min_u16 v{T+5}, v{a[0]}, v{a[1]}")
        r.append(f"v_pk_max_u16 v{T+6}, v{a[2]}, v{a[3]}")
        r.append(f"v_pk_min_u16 v{T+7}, v{a[2]}, v{a[3]}")
        r.append(f"v_pk_min_u16 v{T+4}, v{T+4}, v{T+6}")
        r.append(f"v_pk_max_u16 v{T+5}, v{T+5}, v{T+7}")
        r.append(f"v_pk_max_u16 v{T+4}, v{T+4}, v{T+5}")
        for i in range(4):
            r.append(f"v_pk_sub_i16 v{a[i]}, v{a[i]}, v{T+4}")
        for i in range(4):
            r.append(f"v_pk_ashrrev_i16 v{a[i]}, s36, v{a[i]}")
        for i in range(4):
            r.append(f"v_bfi_b32 v{w[i]}, v{a[i]}, 0, v{w[i]}")
        return r
    def prune_ops(q):
        r = []
        for dp in range(2):
            c0 = prune_col(q, 2 * dp, TP)
            c1 = prune_col(q, 2 * dp + 1, TP + 8)
            for x, y in zip(c0, c1):
                r.append(x); r.append(y)
        return r
    def b_writes(q, off):
        for i in range(4):
            b = BST + q * 16 + i * 4
            e(f"ds_write_b128 v{14+i}, v[{b}:{b+3}] offset:{off}")
    def emit_groups(gs):
        for g in gs:
            for x in g: e(x)

    e("s_and_b32 s40, s3, 3")
    e("s_lshr_b32 s48, s3, 2")
    e("s_mov_b32 s35, 0x7fff7fff")
    e("s_mov_b32 s36, 0x000f000f")
    e("v_lshrrev_b32 v21, 4, v2")
    e("s_lshl_b32 s40, s40, 2")
    e("v_add_u32 v20, s40, v21")
    e("v_and_b32 v22, 15, v2")
    e("v_lshlrev_b32 v23, 13, v20")
    e("s_lshl_b32 s41, s33, 8")
    e("v_lshl_add_u32 v24, v22, 4, s41")
    e("v_add_u32 v12, v23, v24")
    e("v_add_u32 v13, 0x1000, v12")
    e("s_lshl_b32 s41, s48, 17")
    e("s_add_u32 s29, s29, s41")
    e("s_and_b32 s29, s29, 0x1fffff")
    emit_groups(b_loads(1))
    e("v_lshlrev_b32 v23, 10, v20")
    e("v_and_b32 v24, 3, v22")
    e("v_lshl_add_u32 v23, v24, 4, v23")
    e("s_lshl_b32 s41, s48, 14")
    e("v_add_u32 v23, s41, v23")
    e("v_lshrrev_b32 v24, 2, v22")
    for i in range(4):
        e(f"v_xor_b32 v25, {i}, v24")
        e(f"v_lshl_add_u32 v25, v25, 6, v23")
        e(f"v_add_u32 v{26+i}, {i*256}, v25")
    e("s_lshl_b32 s40, s32, 8")
    e("s_and_b32 s41, s3, 3")
    e("s_lshl_b32 s41, s41, 6")
    e("s_add_u32 s40, s40, s41")
    e("v_lshrrev_b32 v20, 3, v2")
    e("v_add_u32 v20, s40, v20")
    e("v_lshlrev_b32 v20, 11, v20")
    e("v_lshrrev_b32 v21, 4, v2")
    e("v_and_b32 v22, 7, v2")
    e("v_xor_b32 v23, v22, v21")
    e("v_xor_b32 v24, 4, v23")
    e("v_lshl_add_u32 v23, v23, 4, v20")
    e("v_lshl_add_u32 v24, v24, 4, v20")
    for i in range(8):
        src = 23 if (i & 1) == 0 else 24
        add = i * 16384 - (i & 3) * 1024
        e(f"v_add_u32 v{V_DMA+i}, {add}, v{src}")
    e("s_cmp_ge_u32 s3, 4")
    e("s_cbranch_scc1 L_producer")

    def adv_a():
        return ["s_add_u32 s28, s28, 128", "s_and_b32 s28, s28, 2047"]
    def adv_b():
        e("s_add_u32 s29, s29, 0x20000")
        e("s_and_b32 s29, s29, 0x1fffff")

    if "noprio" not in FLAGS:
        e("s_setprio 2")
    e("s_lshl_b32 s47, s3, 13")
    e(f"s_add_u32 s47, s47, {A_BASE}")
    e("s_mov_b32 s34, s47")
    e("s_lshr_b32 s40, s3, 1")
    e("s_and_b32 s41, s3, 1")
    e("v_lshrrev_b32 v3, 5, v2")
    e("s_lshl_b32 s42, s33, 8")
    e("s_lshl_b32 s43, s41, 7")
    e("s_add_u32 s42, s42, s43")
    e("v_lshlrev_b32 v16, 3, v3")
    e("v_add_u32 v16, s42, v16")
    for st in range(2):
        for g in a_dma():
            for x in g: e(x)
        for x in adv_a(): e(x)
        e(f"s_add_u32 s34, s34, {A_STAGE}")
        if st == 0:
            for nb in range(2):
                for q in range(4):
                    b = 80 + (nb * 4 + q) * 2
                    e(f"buffer_load_dwordx2 v[{b}:{b+1}], v16, s[{S_B}:{S_B+3}], 0 offen offset:{nb*64+q*16}")
    e("v_and_b32 v24, 31, v2")
    e("v_bfe_u32 v25, v2, 1, 3")
    e("s_lshl_b32 s42, s40, 14")
    e(f"s_add_u32 s42, s42, {A_BASE}")
    e("v_lshlrev_b32 v17, 7, v24")
    e("v_add_u32 v17, s42, v17")
    for s in range(4):
        e(f"v_add_u32 v18, {2*s}, v3")
        e("v_xor_b32 v18, v18, v25")
        e(f"v_lshl_add_u32 v{V_XRD+4+s}, v18, 4, v17")
        e(f"v_mov_b32 v{V_XRD+s}, v{V_XRD+4+s}")
    e("v_bfe_u32 v18, v2, 2, 2")
    e("v_lshl_add_u32 v19, v3, 3, v18")
    e("v_lshlrev_b32 v19, 8, v19")
    e("v_bfe_u32 v20, v2, 4, 1")
    e("v_lshl_add_u32 v19, v20, 5, v19")
    e("v_and_b32 v20, 3, v2")
    e("v_lshl_add_u32 v19, v20, 3, v19")
    e("s_lshl_b32 s42, s41, 1")
    for nb in range(2):
        e(f"s_add_u32 s43, s42, {nb}")
        e("v_xor_b32 v20, s43, v18")
        e(f"v_lshl_add_u32 v{V_WRD+2+nb}, v20, 6, v19")
        e(f"v_mov_b32 v{V_WRD+nb}, v{V_WRD+2+nb}")
    e("s_lshl_b32 s42, s40, 15")
    e(f"s_add_u32 s42, s42, {A_BASE}")
    e("v_lshlrev_b32 v20, 8, v24")
    e("v_add_u32 v20, s42, v20")
    e("v_and_b32 v21, 7, v2")
    e("s_lshl_b32 s42, s41, 3")
    for nb in range(2):
        for qq in range(2):
            e(f"s_add_u32 s43, s42, {nb*4+qq*2}")
            e("v_add_u32 v22, s43, v3")
            e("v_xor_b32 v22, v22, v21")
            e(f"v_lshl_add_u32 v{V_EW+nb*2+qq}, v22, 4, v20")
    e("s_waitcnt vmcnt(24)")
    e("s_branch L_prune0")
    lab("L_cons2")
    e("s_waitcnt vmcnt(8)")
    e("s_mov_b32 s42, 0xffff0000")
    for nb in range(2):
        for q in range(4):
            b = 80 + (nb * 4 + q) * 2
            a = acc(nb, 0) + 4 * q
            e(f"v_lshlrev_b32 v{a}, 16, v{b}")
            e(f"v_and_b32 v{a+1}, s42, v{b}")
            e(f"v_lshlrev_b32 v{a+2}, 16, v{b+1}")
            e(f"v_and_b32 v{a+3}, s42, v{b+1}")
    for nb in range(2):
        for mb in range(1, 4):
            for r in range(16):
                e(f"v_mov_b32 v{acc(nb,mb)+r}, v{acc(nb,0)+r}")
    e("s_waitcnt lgkmcnt(0)")
    for r in range(FR + 24, FR + 48):
        e(f"v_mov_b32 v{r}, 0")
    e("s_mov_b32 s31, 0")
    e("s_mov_b32 s44, 0")
    e(f"s_mov_b32 s45, {2*A_STAGE}")
    e("s_waitcnt lgkmcnt(0)")
    stamp()
    e("s_barrier")
    stamp()
    lab("L_cloop")
    d = a_dma()
    pre = ["s_cmp_lt_u32 s31, 14", f"s_cselect_b32 s{S_X+2}, s37, 0", "s_add_u32 s34, s47, s45"]
    kstep(cons_mfmas(1), cons_reads(0, 0), {3: pre, 4: d[0], 6: d[1]})
    e("s_waitcnt lgkmcnt(0)")
    kstep(cons_mfmas(0), cons_reads(1, 1), {4: d[2], 6: d[3]})
    e("s_waitcnt lgkmcnt(0)")
    adv = [f"s_add_u32 s44, s44, {B_SLOT}", f"s_cmp_eq_u32 s44, {3*B_SLOT}", "s_cselect_b32 s44, 0, s44",
           "s_lshl_b32 s46, s44, 1",
           f"s_add_u32 s45, s45, {A_STAGE}", f"s_cmp_eq_u32 s45, {3*A_STAGE}", "s_cselect_b32 s45, 0, s45"]
    kstep(cons_mfmas(1), cons_reads(2, 0), {4: d[4], 5: adv[:4], 6: d[5], 7: adv[4:]})
    e("s_waitcnt lgkmcnt(0)")
    upd = [f"v_add_u32 v{V_XRD+s}, s46, v{V_XRD+4+s}" for s in range(4)] + \
          [f"v_add_u32 v{V_WRD+nb}, s44, v{V_WRD+2+nb}" for nb in range(2)]
    kstep(cons_mfmas(0), cons_reads(3, 1), {4: d[6] + upd[:3], 5: upd[3:], 6: d[7] + adv_a(), 7: ["s_add_u32 s31, s31, 1", "s_cmp_lt_u32 s31, 16"]})
    e("s_cbranch_scc1 L_cnodrain")
    e("s_waitcnt vmcnt(0)")
    lab("L_cnodrain")
    e("s_waitcnt vmcnt(8) lgkmcnt(0)")
    stamp()
    e("s_barrier")
    stamp2()
    e("s_cbranch_scc1 L_cloop")
    blocks = [(nb, mb) for mb in range(4) for nb in range(2)]
    mf = []
    for (nb, mb) in blocks:
        w = wfrag(1, nb); x = xfrag(1, mb)
        mf.append(f"v_mfma_f32_32x32x16_bf16 {accr(nb,mb)}, v[{w}:{w+3}], v[{x}:{x+3}], {accr(nb,mb)}")
    def conv(bi):
        nb, mb = blocks[bi]
        a = acc(nb, mb)
        t = V_T if (bi & 1) == 0 else V_T + 8
        for j in range(8):
            e(f"v_cvt_pk_bf16_f32 v{t+j}, v{a+2*j}, v{a+2*j+1}")
        e("s_nop 1")
        for qq in range(2):
            b = t + qq * 4
            e(f"v_permlane32_swap_b32 v{b}, v{b+2}")
            e(f"v_permlane32_swap_b32 v{b+1}, v{b+3}")
        for qq in range(2):
            b = t + qq * 4
            e(f"ds_write_b128 v{V_EW+nb*2+qq}, v[{b}:{b+3}] offset:{mb*8192}")
    for i, m in enumerate(mf):
        e(m)
        if i == 2:
            e("s_nop 9")
        if i >= 2:
            conv(i - 2)
        if i == 5:
            e("s_waitcnt lgkmcnt(0)")
            e("s_barrier")
    e("s_nop 15")
    conv(6)
    e("s_nop 7")
    conv(7)
    stamp()
    e("s_branch L_store")

    lab("L_producer")
    adv_b()
    emit_groups(b_loads(2)); adv_b()
    emit_groups(b_loads(3)); adv_b()
    for i in range(4):
        e(f"v_subrev_u32 v{4+i}, {B_SLOT}, v{26+i}")
    e("s_waitcnt vmcnt(8)")
    lab("L_prune0")
    for x in prune_ops(1): e(x)
    for i in range(4):
        b = BST + 16 + i * 4
        e(f"ds_write_b128 v{26+i}, v[{b}:{b+3}]")
    e("s_cmp_lt_u32 s3, 4")
    e("s_cbranch_scc1 L_cons2")
    e("s_mov_b32 s30, 0")
    e("s_mov_b32 s31, 0")
    e(f"s_mov_b32 s44, {2*B_SLOT}")
    stamp()
    e("s_barrier")
    stamp()
    lab("L_ploop")
    for u in range(4):
        e("s_cmp_lt_u32 s31, 12")
        e(f"s_cselect_b32 s{S_W+2}, s38, 0")
        e("s_add_u32 s31, s31, 1")
        for i in range(4):
            e(f"v_add_u32 v{14+i}, s44, v{4+i}")
        e(f"s_add_u32 s44, s44, {B_SLOT}")
        e(f"s_cmp_eq_u32 s44, {3*B_SLOT}")
        e("s_cselect_b32 s44, 0, s44")
        e("s_waitcnt vmcnt(4)")
        q = (u + 2) & 3
        for x in merge(prune_ops(q), b_loads(u)): e(x)
        b_writes(q, 0)
        adv_b()
        if u == 3:
            e("s_add_u32 s30, s30, 1")
            e("s_cmp_lt_u32 s30, 4")
        if STAMP and "pstamp" in FLAGS:
            e("s_waitcnt lgkmcnt(4)")
            e("s_memtime s[50:51]")
            e("s_waitcnt lgkmcnt(0)")
            e("v_mov_b32 v30, s50")
            e("buffer_store_dword v30, v31, s[52:55], 0 offen")
            e("v_add_u32 v31, 4, v31")
        else:
            e("s_waitcnt lgkmcnt(4)")
        e("s_barrier")
        if "pstamp" in FLAGS: stamp2()
    e("s_cbranch_scc1 L_ploop")

    def addr_calc(rowbase_sgpr):
        e("v_lshrrev_b32 v16, 4, v2")
        e("v_and_b32 v17, 15, v2")
        e(f"v_add_u32 v18, {rowbase_sgpr}, v16")
        e("v_xor_b32 v19, v17, v16")
        e("v_xor_b32 v20, 4, v19")
        e("v_lshlrev_b32 v21, 8, v18")
        e(f"v_add_u32 v21, {A_BASE}, v21")
        e("v_lshl_add_u32 v19, v19, 4, v21")
        e("v_lshl_add_u32 v20, v20, 4, v21")
        e("s_lshl_b32 s41, s32, 8")
        e("v_add_u32 v18, s41, v18")
        e("v_lshlrev_b32 v18, 11, v18")
        e("s_lshl_b32 s41, s33, 8")
        e("v_lshl_add_u32 v21, v17, 4, s41")
        e("v_add_u32 v18, v18, v21")
    def store_rows(n, rb):
        for j in range(n):
            va = 19 if (j & 1) == 0 else 20
            e(f"ds_read_b128 v[{rb+4*j}:{rb+3+4*j}], v{va} offset:{j*1024}")
        for j in range(n):
            e(f"s_mov_b32 s42, {j*8192}")
            e(f"s_waitcnt lgkmcnt({n-1-j})")
            e(f"buffer_store_dwordx4 v[{rb+4*j}:{rb+3+4*j}], v18, s[{S_O}:{S_O+3}], s42 offen{NT('nto')}")
    e("s_waitcnt vmcnt(0) lgkmcnt(0)")
    e("s_and_b32 s40, s39, 3")
    e("s_lshr_b32 s43, s40, 1")
    e("s_lshl_b32 s43, s43, 7")
    e("s_and_b32 s40, s40, 1")
    e("s_lshl_b32 s40, s40, 5")
    e("s_add_u32 s40, s40, s43")
    addr_calc("s40")
    e("s_barrier")
    store_rows(8, 32)
    lab("L_store")
    e("s_lshr_b32 s43, s39, 2")
    e("s_lshl_b32 s43, s43, 7")
    e("s_and_b32 s40, s39, 3")
    e("s_lshl_b32 s40, s40, 4")
    e("s_add_u32 s40, s40, s43")
    e("s_add_u32 s40, s40, 64")
    addr_calc("s40")
    e("s_waitcnt lgkmcnt(0)")
    e("s_barrier")
    store_rows(4, 64)
    stamp()
    if STAMP:
        e("s_waitcnt vmcnt(0)")
        stamp()
        rstamp()
    lab("L_end")
    e("s_endpgm")
    return HEADER.format(k=KNAME, lds=LDS_BYTES) + "\n".join(out) + "\n" + FOOTER.format(k=KNAME, nv=256, ao=256)

if __name__ == "__main__":
    path = sys.argv[1] if len(sys.argv) > 1 else "standalone__structured_sparse_n_m__ragged.s"
    for a in sys.argv[2:]:
        if a == "stamp": STAMP = True
        else: FLAGS.add(a)
    open(path, "w").write(gen())
    print("wrote", path)
```

```python
import sys

KNAME = "standalone__structured_sparse_n_m__ragged_kernel"
LDS_BYTES = 147456

HEADER = """; Kernarg layout for this problem (48 bytes, ptrs only, base s[0:1]):
; @launch grid=(256,1,1) block=(512,1,1) lds={lds}
.amdgcn_target "amdgcn-amd-amdhsa--gfx950"
.text
.globl {k}
.p2align 8
.type {k},@function
{k}:
"""

FOOTER = """
.section .rodata,"a"
.p2align 6
.amdhsa_kernel {k}
  .amdhsa_next_free_vgpr {nv}
  .amdhsa_next_free_sgpr 64
  .amdhsa_accum_offset {ao}
  .amdhsa_group_segment_fixed_size 0
  .amdhsa_kernarg_size 48
  .amdhsa_user_sgpr_count 2
  .amdhsa_user_sgpr_kernarg_segment_ptr 1
  .amdhsa_system_sgpr_workgroup_id_x 1
.end_amdhsa_kernel
"""

A_BASE = 49152
A_STAGE = 32768
B_SLOT = 16384
S_X, S_W, S_B, S_O = 12, 16, 20, 24

STAMP = False
FLAGS = set()
out = []
def NT(f):
    if f == "nto":
        for k, v in (("o_nt", " nt"), ("o_sc1", " sc1"), ("o_sc01", " sc0 sc1"), ("o_sc1nt", " sc1 nt"), ("o_sc01nt", " sc0 sc1 nt"), ("nto", " nt")):
            if k in FLAGS: return v
        return ""
    if f == "ntx":
        for k, v in (("x_sc1", " sc1"), ("x_sc1nt", " sc1 nt"), ("x_sc0", " sc0"), ("ntx", " nt")):
            if k in FLAGS: return v
        return ""
    if f == "ntw":
        for k, v in (("w_sc1", " sc1"), ("w_sc0", " sc0"), ("ntw", " nt")):
            if k in FLAGS: return v
        return ""
    return " nt" if f in FLAGS else ""
def e(s):
    out.append("  " + s)
def lab(s):
    out.append(s + ":")

def _st(off):
    e("s_memtime s[50:51]")
    e("s_waitcnt lgkmcnt(0)")
    e("v_mov_b32 v30, s50")
    e(f"buffer_store_dword v30, v31, s[52:55], 0 offen offset:{off}")
def stamp():
    if not STAMP: return
    _st(0)
    e("v_add_u32 v31, 4, v31")
def stamp2():
    if "stamp2" not in FLAGS: return
    _st(124)
def rstamp():
    if not STAMP: return
    e("s_memrealtime s[50:51]")
    e("s_waitcnt lgkmcnt(0)")
    e("v_mov_b32 v30, s50")
    e("buffer_store_dword v30, v31, s[52:55], 0 offen offset:256")

ACC = 128
def acc(nb, mb):
    return ACC + (nb * 4 + mb) * 16
def accr(nb, mb):
    b = acc(nb, mb)
    return f"v[{b}:{b+15}]"
FR = 32
def xfrag(p, mb):
    return FR + p * 24 + mb * 4
def wfrag(p, nb):
    return FR + p * 24 + 16 + nb * 4
V_XRD = 4
V_WRD = 12
V_EW = 96
V_T = 100
V_DMA = 116

def cons_reads(s, p):
    r = []
    def wr(nb):
        b = wfrag(p, nb)
        for j2 in range(2):
            off = (16 * s + 4 * j2) * 256
            r.append(f"ds_read_b64_tr_b16 v[{b+2*j2}:{b+2*j2+1}], v{V_WRD+nb} offset:{off}")
    def xr(mb):
        b = xfrag(p, mb)
        off = mb * 4096
        r.append(f"ds_read_b128 v[{b}:{b+3}], v{V_XRD + s} offset:{off}")
    wr(0)
    for mb in range(4):
        xr(mb)
    wr(1)
    return r

def cons_mfmas(p):
    r = []
    for nb in range(2):
        for mb in range(4):
            w = wfrag(p, nb); x = xfrag(p, mb)
            r.append(f"v_mfma_f32_32x32x16_bf16 {accr(nb,mb)}, v[{w}:{w+3}], v[{x}:{x+3}], {accr(nb,mb)}")
    return r

def a_dma():
    r = []
    for half in range(2):
        for i4 in range(4):
            i = half * 4 + i4
            g = []
            if i4 == 0:
                g.append(f"s_add_u32 m0, s34, {half*4096}")
                g.append("s_nop 0")
            g.append(f"buffer_load_dwordx4 v{V_DMA+i}, s[{S_X}:{S_X+3}], s28 offen offset:{i4*1024}{NT('ntx')} lds")
            r.append(g)
    return r

def kstep(mf, reads, extra):
    fi = 0
    for i, m in enumerate(mf):
        e(m)
        for _ in range(2):
            if fi < len(reads):
                e(reads[fi]); fi += 1
        for x in extra.get(i, []): e(x)

def merge(main, side):
    res = []
    n = len(side)
    if n == 0:
        return list(main)
    L = len(main)
    si = 0
    for i, m in enumerate(main):
        while si < n and si * L <= i * n:
            res.extend(side[si]); si += 1
        res.append(m)
    while si < n:
        res.extend(side[si]); si += 1
    return res

def gen():
    out.clear()
    e("s_cmp_ge_u32 s2, 256")
    e("s_cbranch_scc1 L_end")
    e("s_load_dwordx8 s[4:11], s[0:1], 0")
    e("v_lshrrev_b32 v1, 6, v0")
    e("v_and_b32 v2, 63, v0")
    e("s_and_b32 s32, s2, 7")
    e("v_readfirstlane_b32 s3, v1")
    e("s_lshr_b32 s33, s2, 3")
    e("s_lshl_b32 s32, s32, 2")
    e("s_lshr_b32 s40, s33, 3")
    e("s_add_u32 s32, s32, s40")
    e("s_and_b32 s33, s33, 7")
    e("s_mov_b32 s37, 0x1000000")
    e("s_mov_b32 s38, 0x200000")
    e("s_mov_b32 s39, s3")
    if "norot" in FLAGS:
        e("s_mov_b32 s28, 0")
    elif "rotn8" in FLAGS:
        e("s_lshl_b32 s28, s33, 8")
    elif "rotn4" in FLAGS:
        e("s_and_b32 s28, s33, 3")
        e("s_lshl_b32 s28, s28, 9")
    elif "rotn2" in FLAGS:
        e("s_and_b32 s28, s33, 1")
        e("s_lshl_b32 s28, s28, 10")
    else:
        e("s_and_b32 s28, s32, 3")
        e("s_lshl_b32 s28, s28, 9")
    e("s_lshl_b32 s29, s28, 10")
    e("s_waitcnt lgkmcnt(0)")
    for (srd, p, sz) in ((S_X, 4, "0x1000000"), (S_W, 6, "0x200000"), (S_B, 8, "0x800"), (S_O, 10, "0x1000000")):
        e(f"s_mov_b32 s{srd}, s{p}")
        e(f"s_and_b32 s{srd+1}, s{p+1}, 0xffff")
        e(f"s_mov_b32 s{srd+2}, {sz}")
        e(f"s_mov_b32 s{srd+3}, 0x00020000")
    if STAMP:
        e("s_load_dwordx2 s[52:53], s[0:1], 40")
        e("s_waitcnt lgkmcnt(0)")
        e("s_and_b32 s53, s53, 0xffff")
        e("s_mov_b32 s54, 0x1000000")
        e("s_mov_b32 s55, 0x00020000")
        e("s_lshl_b32 s56, s2, 3")
        e("s_add_u32 s56, s56, s3")
        e("s_lshl_b32 s56, s56, 10")
        e("v_mov_b32 v31, s56")
        rstamp()
        stamp()
    BST = 48; TP = 32
    def b_loads(q):
        r = []
        for i in range(4):
            b = BST + q * 16 + i * 4
            va = 12 + (i >> 1)
            r.append([f"buffer_load_dwordx4 v[{b}:{b+3}], v{va}, s[{S_W}:{S_W+3}], s29 offen offset:{(i&1)*2048}{NT('ntw')}"])
        return r
    def prune_col(q, d, T):
        w = [BST + q * 16 + i * 4 + d for i in range(4)]
        a = [T + i for i in range(4)]
        r = []
        for i in range(4):
            r.append(f"v_and_b32 v{a[i]}, s35, v{w[i]}")
        r.append(f"v_pk_max_u16 v{T+4}, v{a[0]}, v{a[1]}")
        r.append(f"v_pk_min_u16 v{T+5}, v{a[0]}, v{a[1]}")
        r.append(f"v_pk_max_u16 v{T+6}, v{a[2]}, v{a[3]}")
        r.append(f"v_pk_min_u16 v{T+7}, v{a[2]}, v{a[3]}")
        r.append(f"v_pk_min_u16 v{T+4}, v{T+4}, v{T+6}")
        r.append(f"v_pk_max_u16 v{T+5}, v{T+5}, v{T+7}")
        r.append(f"v_pk_max_u16 v{T+4}, v{T+4}, v{T+5}")
        for i in range(4):
            r.append(f"v_pk_sub_i16 v{a[i]}, v{a[i]}, v{T+4}")
        for i in range(4):
            r.append(f"v_pk_ashrrev_i16 v{a[i]}, s36, v{a[i]}")
        for i in range(4):
            r.append(f"v_bfi_b32 v{w[i]}, v{a[i]}, 0, v{w[i]}")
        return r
    def prune_ops(q):
        r = []
        for dp in range(2):
            c0 = prune_col(q, 2 * dp, TP)
            c1 = prune_col(q, 2 * dp + 1, TP + 8)
            for x, y in zip(c0, c1):
                r.append(x); r.append(y)
        return r
    def b_writes(q, off):
        for i in range(4):
            b = BST + q * 16 + i * 4
            e(f"ds_write_b128 v{14+i}, v[{b}:{b+3}] offset:{off}")
    def emit_groups(gs):
        for g in gs:
            for x in g: e(x)

    e("s_and_b32 s40, s3, 3")
    e("s_lshr_b32 s48, s3, 2")
    e("s_mov_b32 s35, 0x7fff7fff")
    e("s_mov_b32 s36, 0x000f000f")
    e("v_lshrrev_b32 v21, 4, v2")
    e("s_lshl_b32 s40, s40, 2")
    e("v_add_u32 v20, s40, v21")
    e("v_and_b32 v22, 15, v2")
    e("v_lshlrev_b32 v23, 13, v20")
    e("s_lshl_b32 s41, s33, 8")
    e("v_lshl_add_u32 v24, v22, 4, s41")
    e("v_add_u32 v12, v23, v24")
    e("v_add_u32 v13, 0x1000, v12")
    e("s_lshl_b32 s41, s48, 17")
    e("s_add_u32 s29, s29, s41")
    e("s_and_b32 s29, s29, 0x1fffff")
    emit_groups(b_loads(1))
    e("v_lshlrev_b32 v23, 10, v20")
    e("v_and_b32 v24, 3, v22")
    e("v_lshl_add_u32 v23, v24, 4, v23")
    e("s_lshl_b32 s41, s48, 14")
    e("v_add_u32 v23, s41, v23")
    e("v_lshrrev_b32 v24, 2, v22")
    for i in range(4):
        e(f"v_xor_b32 v25, {i}, v24")
        e(f"v_lshl_add_u32 v25, v25, 6, v23")
        e(f"v_add_u32 v{26+i}, {i*256}, v25")
    e("s_lshl_b32 s40, s32, 8")
    e("s_and_b32 s41, s3, 3")
    e("s_lshl_b32 s41, s41, 6")
    e("s_add_u32 s40, s40, s41")
    e("v_lshrrev_b32 v20, 3, v2")
    e("v_add_u32 v20, s40, v20")
    e("v_lshlrev_b32 v20, 11, v20")
    e("v_lshrrev_b32 v21, 4, v2")
    e("v_and_b32 v22, 7, v2")
    e("v_xor_b32 v23, v22, v21")
    e("v_xor_b32 v24, 4, v23")
    e("v_lshl_add_u32 v23, v23, 4, v20")
    e("v_lshl_add_u32 v24, v24, 4, v20")
    for i in range(8):
        src = 23 if (i & 1) == 0 else 24
        add = i * 16384 - (i & 3) * 1024
        e(f"v_add_u32 v{V_DMA+i}, {add}, v{src}")
    e("s_cmp_ge_u32 s3, 4")
    e("s_cbranch_scc1 L_producer")

    def adv_a():
        return ["s_add_u32 s28, s28, 128", "s_and_b32 s28, s28, 2047"]
    def adv_b():
        e("s_add_u32 s29, s29, 0x20000")
        e("s_and_b32 s29, s29, 0x1fffff")

    if "noprio" not in FLAGS:
        e("s_setprio 2")
    e("s_lshl_b32 s47, s3, 13")
    e(f"s_add_u32 s47, s47, {A_BASE}")
    e("s_mov_b32 s34, s47")
    e("s_lshr_b32 s40, s3, 1")
    e("s_and_b32 s41, s3, 1")
    e("v_lshrrev_b32 v3, 5, v2")
    e("s_lshl_b32 s42, s33, 8")
    e("s_lshl_b32 s43, s41, 7")
    e("s_add_u32 s42, s42, s43")
    e("v_lshlrev_b32 v16, 3, v3")
    e("v_add_u32 v16, s42, v16")
    for st in range(2):
        for g in a_dma():
            for x in g: e(x)
        for x in adv_a(): e(x)
        e(f"s_add_u32 s34, s34, {A_STAGE}")
        if st == 0:
            for nb in range(2):
                for q in range(4):
                    b = 80 + (nb * 4 + q) * 2
                    e(f"buffer_load_dwordx2 v[{b}:{b+1}], v16, s[{S_B}:{S_B+3}], 0 offen offset:{nb*64+q*16}")
    e("v_and_b32 v24, 31, v2")
    e("v_bfe_u32 v25, v2, 1, 3")
    e("s_lshl_b32 s42, s40, 14")
    e(f"s_add_u32 s42, s42, {A_BASE}")
    e("v_lshlrev_b32 v17, 7, v24")
    e("v_add_u32 v17, s42, v17")
    for s in range(4):
        e(f"v_add_u32 v18, {2*s}, v3")
        e("v_xor_b32 v18, v18, v25")
        e(f"v_lshl_add_u32 v{V_XRD+4+s}, v18, 4, v17")
        e(f"v_mov_b32 v{V_XRD+s}, v{V_XRD+4+s}")
    e("v_bfe_u32 v18, v2, 2, 2")
    e("v_lshl_add_u32 v19, v3, 3, v18")
    e("v_lshlrev_b32 v19, 8, v19")
    e("v_bfe_u32 v20, v2, 4, 1")
    e("v_lshl_add_u32 v19, v20, 5, v19")
    e("v_and_b32 v20, 3, v2")
    e("v_lshl_add_u32 v19, v20, 3, v19")
    e("s_lshl_b32 s42, s41, 1")
    for nb in range(2):
        e(f"s_add_u32 s43, s42, {nb}")
        e("v_xor_b32 v20, s43, v18")
        e(f"v_lshl_add_u32 v{V_WRD+2+nb}, v20, 6, v19")
        e(f"v_mov_b32 v{V_WRD+nb}, v{V_WRD+2+nb}")
    e("s_lshl_b32 s42, s40, 15")
    e(f"s_add_u32 s42, s42, {A_BASE}")
    e("v_lshlrev_b32 v20, 8, v24")
    e("v_add_u32 v20, s42, v20")
    e("v_and_b32 v21, 7, v2")
    e("s_lshl_b32 s42, s41, 3")
    for nb in range(2):
        for qq in range(2):
            e(f"s_add_u32 s43, s42, {nb*4+qq*2}")
            e("v_add_u32 v22, s43, v3")
            e("v_xor_b32 v22, v22, v21")
            e(f"v_lshl_add_u32 v{V_EW+nb*2+qq}, v22, 4, v20")
    e("s_waitcnt vmcnt(24)")
    e("s_branch L_prune0")
    lab("L_cons2")
    e("s_waitcnt vmcnt(8)")
    e("s_mov_b32 s42, 0xffff0000")
    for nb in range(2):
        for q in range(4):
            b = 80 + (nb * 4 + q) * 2
            a = acc(nb, 0) + 4 * q
            e(f"v_lshlrev_b32 v{a}, 16, v{b}")
            e(f"v_and_b32 v{a+1}, s42, v{b}")
            e(f"v_lshlrev_b32 v{a+2}, 16, v{b+1}")
            e(f"v_and_b32 v{a+3}, s42, v{b+1}")
    for nb in range(2):
        for mb in range(1, 4):
            for r in range(16):
                e(f"v_mov_b32 v{acc(nb,mb)+r}, v{acc(nb,0)+r}")
    e("s_waitcnt lgkmcnt(0)")
    for r in range(FR + 24, FR + 48):
        e(f"v_mov_b32 v{r}, 0")
    e("s_mov_b32 s31, 0")
    e("s_mov_b32 s44, 0")
    e(f"s_mov_b32 s45, {2*A_STAGE}")
    e("s_waitcnt lgkmcnt(0)")
    stamp()
    e("s_barrier")
    stamp()
    lab("L_cloop")
    d = a_dma()
    pre = ["s_cmp_lt_u32 s31, 14", f"s_cselect_b32 s{S_X+2}, s37, 0", "s_add_u32 s34, s47, s45"]
    kstep(cons_mfmas(1), cons_reads(0, 0), {3: pre, 4: d[0], 6: d[1]})
    e("s_waitcnt lgkmcnt(0)")
    kstep(cons_mfmas(0), cons_reads(1, 1), {4: d[2], 6: d[3]})
    e("s_waitcnt lgkmcnt(0)")
    adv = [f"s_add_u32 s44, s44, {B_SLOT}", f"s_cmp_eq_u32 s44, {3*B_SLOT}", "s_cselect_b32 s44, 0, s44",
           "s_lshl_b32 s46, s44, 1",
           f"s_add_u32 s45, s45, {A_STAGE}", f"s_cmp_eq_u32 s45, {3*A_STAGE}", "s_cselect_b32 s45, 0, s45"]
    kstep(cons_mfmas(1), cons_reads(2, 0), {4: d[4], 5: adv[:4], 6: d[5], 7: adv[4:]})
    e("s_waitcnt lgkmcnt(0)")
    upd = [f"v_add_u32 v{V_XRD+s}, s46, v{V_XRD+4+s}" for s in range(4)] + \
          [f"v_add_u32 v{V_WRD+nb}, s44, v{V_WRD+2+nb}" for nb in range(2)]
    kstep(cons_mfmas(0), cons_reads(3, 1), {4: d[6] + upd[:3], 5: upd[3:], 6: d[7] + adv_a(), 7: ["s_add_u32 s31, s31, 1", "s_cmp_lt_u32 s31, 16"]})
    e("s_cbranch_scc1 L_cnodrain")
    e("s_waitcnt vmcnt(0)")
    lab("L_cnodrain")
    e("s_waitcnt vmcnt(8) lgkmcnt(0)")
    stamp()
    e("s_barrier")
    stamp2()
    e("s_cbranch_scc1 L_cloop")
    blocks = [(nb, mb) for mb in range(4) for nb in range(2)]
    mf = []
    for (nb, mb) in blocks:
        w = wfrag(1, nb); x = xfrag(1, mb)
        mf.append(f"v_mfma_f32_32x32x16_bf16 {accr(nb,mb)}, v[{w}:{w+3}], v[{x}:{x+3}], {accr(nb,mb)}")
    def conv(bi):
        nb, mb = blocks[bi]
        a = acc(nb, mb)
        t = V_T if (bi & 1) == 0 else V_T + 8
        for j in range(8):
            e(f"v_cvt_pk_bf16_f32 v{t+j}, v{a+2*j}, v{a+2*j+1}")
        e("s_nop 1")
        for qq in range(2):
            b = t + qq * 4
            e(f"v_permlane32_swap_b32 v{b}, v{b+2}")
            e(f"v_permlane32_swap_b32 v{b+1}, v{b+3}")
        for qq in range(2):
            b = t + qq * 4
            e(f"ds_write_b128 v{V_EW+nb*2+qq}, v[{b}:{b+3}] offset:{mb*8192}")
    for i, m in enumerate(mf):
        e(m)
        if i == 2:
            e("s_nop 9")
        if i >= 2:
            conv(i - 2)
        if i == 5:
            e("s_waitcnt lgkmcnt(0)")
            e("s_barrier")
    e("s_nop 15")
    conv(6)
    e("s_nop 7")
    conv(7)
    stamp()
    e("s_branch L_store")

    lab("L_producer")
    adv_b()
    emit_groups(b_loads(2)); adv_b()
    emit_groups(b_loads(3)); adv_b()
    for i in range(4):
        e(f"v_subrev_u32 v{4+i}, {B_SLOT}, v{26+i}")
    e("s_waitcnt vmcnt(8)")
    lab("L_prune0")
    for x in prune_ops(1): e(x)
    for i in range(4):
        b = BST + 16 + i * 4
        e(f"ds_write_b128 v{26+i}, v[{b}:{b+3}]")
    e("s_cmp_lt_u32 s3, 4")
    e("s_cbranch_scc1 L_cons2")
    e("s_mov_b32 s30, 0")
    e("s_mov_b32 s31, 0")
    e(f"s_mov_b32 s44, {2*B_SLOT}")
    stamp()
    e("s_barrier")
    stamp()
    lab("L_ploop")
    for u in range(4):
        e("s_cmp_lt_u32 s31, 12")
        e(f"s_cselect_b32 s{S_W+2}, s38, 0")
        e("s_add_u32 s31, s31, 1")
        for i in range(4):
            e(f"v_add_u32 v{14+i}, s44, v{4+i}")
        e(f"s_add_u32 s44, s44, {B_SLOT}")
        e(f"s_cmp_eq_u32 s44, {3*B_SLOT}")
        e("s_cselect_b32 s44, 0, s44")
        e("s_waitcnt vmcnt(4)")
        q = (u + 2) & 3
        for x in merge(prune_ops(q), b_loads(u)): e(x)
        b_writes(q, 0)
        adv_b()
        if u == 3:
            e("s_add_u32 s30, s30, 1")
            e("s_cmp_lt_u32 s30, 4")
        if STAMP and "pstamp" in FLAGS:
            e("s_waitcnt lgkmcnt(4)")
            e("s_memtime s[50:51]")
            e("s_waitcnt lgkmcnt(0)")
            e("v_mov_b32 v30, s50")
            e("buffer_store_dword v30, v31, s[52:55], 0 offen")
            e("v_add_u32 v31, 4, v31")
        else:
            e("s_waitcnt lgkmcnt(4)")
        e("s_barrier")
        if "pstamp" in FLAGS: stamp2()
    e("s_cbranch_scc1 L_ploop")

    def addr_calc(rowbase_sgpr):
        e("v_lshrrev_b32 v16, 4, v2")
        e("v_and_b32 v17, 15, v2")
        e(f"v_add_u32 v18, {rowbase_sgpr}, v16")
        e("v_xor_b32 v19, v17, v16")
        e("v_xor_b32 v20, 4, v19")
        e("v_lshlrev_b32 v21, 8, v18")
        e(f"v_add_u32 v21, {A_BASE}, v21")
        e("v_lshl_add_u32 v19, v19, 4, v21")
        e("v_lshl_add_u32 v20, v20, 4, v21")
        e("s_lshl_b32 s41, s32, 8")
        e("v_add_u32 v18, s41, v18")
        e("v_lshlrev_b32 v18, 11, v18")
        e("s_lshl_b32 s41, s33, 8")
        e("v_lshl_add_u32 v21, v17, 4, s41")
        e("v_add_u32 v18, v18, v21")
    def store_rows(n, rb):
        for j in range(n):
            va = 19 if (j & 1) == 0 else 20
            e(f"ds_read_b128 v[{rb+4*j}:{rb+3+4*j}], v{va} offset:{j*1024}")
        for j in range(n):
            e(f"s_mov_b32 s42, {j*8192}")
            e(f"s_waitcnt lgkmcnt({n-1-j})")
            e(f"buffer_store_dwordx4 v[{rb+4*j}:{rb+3+4*j}], v18, s[{S_O}:{S_O+3}], s42 offen{NT('nto')}")
    e("s_waitcnt vmcnt(0) lgkmcnt(0)")
    e("s_and_b32 s40, s39, 3")
    e("s_lshr_b32 s43, s40, 1")
    e("s_lshl_b32 s43, s43, 7")
    e("s_and_b32 s40, s40, 1")
    e("s_lshl_b32 s40, s40, 5")
    e("s_add_u32 s40, s40, s43")
    addr_calc("s40")
    e("s_barrier")
    store_rows(8, 32)
    lab("L_store")
    e("s_lshr_b32 s43, s39, 2")
    e("s_lshl_b32 s43, s43, 7")
    e("s_and_b32 s40, s39, 3")
    e("s_lshl_b32 s40, s40, 4")
    e("s_add_u32 s40, s40, s43")
    e("s_add_u32 s40, s40, 64")
    addr_calc("s40")
    e("s_waitcnt lgkmcnt(0)")
    e("s_barrier")
    store_rows(4, 64)
    stamp()
    if STAMP:
        e("s_waitcnt vmcnt(0)")
        stamp()
        rstamp()
    lab("L_end")
    e("s_endpgm")
    return HEADER.format(k=KNAME, lds=LDS_BYTES) + "\n".join(out) + "\n" + FOOTER.format(k=KNAME, nv=256, ao=256)

if __name__ == "__main__":
    path = sys.argv[1] if len(sys.argv) > 1 else "standalone__structured_sparse_n_m__ragged.s"
    for a in sys.argv[2:]:
        if a == "stamp": STAMP = True
        else: FLAGS.add(a)
    open(path, "w").write(gen())
    print("wrote", path)
```

```python
import sys

KNAME = "standalone__structured_sparse_n_m__ragged_kernel"
LDS_BYTES = 147456

HEADER = """; Kernarg layout for this problem (48 bytes, ptrs only, base s[0:1]):
; @launch grid=(256,1,1) block=(512,1,1) lds={lds}
.amdgcn_target "amdgcn-amd-amdhsa--gfx950"
.text
.globl {k}
.p2align 8
.type {k},@function
{k}:
"""

FOOTER = """
.section .rodata,"a"
.p2align 6
.amdhsa_kernel {k}
  .amdhsa_next_free_vgpr {nv}
  .amdhsa_next_free_sgpr 64
  .amdhsa_accum_offset {ao}
  .amdhsa_group_segment_fixed_size 0
  .amdhsa_kernarg_size 48
  .amdhsa_user_sgpr_count 2
  .amdhsa_user_sgpr_kernarg_segment_ptr 1
  .amdhsa_system_sgpr_workgroup_id_x 1
.end_amdhsa_kernel
"""

A_BASE = 49152
A_STAGE = 32768
B_SLOT = 16384
S_X, S_W, S_B, S_O = 12, 16, 20, 24

STAMP = False
FLAGS = set()
out = []
def NT(f):
    if f == "nto":
        for k, v in (("o_nt", " nt"), ("o_sc1", " sc1"), ("o_sc01", " sc0 sc1"), ("o_sc1nt", " sc1 nt"), ("o_sc01nt", " sc0 sc1 nt"), ("nto", " nt")):
            if k in FLAGS: return v
        return ""
    if f == "ntx":
        for k, v in (("x_sc1", " sc1"), ("x_sc1nt", " sc1 nt"), ("x_sc0", " sc0"), ("ntx", " nt")):
            if k in FLAGS: return v
        return ""
    if f == "ntw":
        for k, v in (("w_sc1", " sc1"), ("w_sc0", " sc0"), ("ntw", " nt")):
            if k in FLAGS: return v
        return ""
    return " nt" if f in FLAGS else ""
def e(s):
    out.append("  " + s)
def lab(s):
    out.append(s + ":")

def _st(off):
    e("s_memtime s[50:51]")
    e("s_waitcnt lgkmcnt(0)")
    e("v_mov_b32 v30, s50")
    e(f"buffer_store_dword v30, v31, s[52:55], 0 offen offset:{off}")
def stamp():
    if not STAMP: return
    _st(0)
    e("v_add_u32 v31, 4, v31")
def stamp2():
    if "stamp2" not in FLAGS: return
    _st(124)
def rstamp():
    if not STAMP: return
    e("s_memrealtime s[50:51]")
    e("s_waitcnt lgkmcnt(0)")
    e("v_mov_b32 v30, s50")
    e("buffer_store_dword v30, v31, s[52:55], 0 offen offset:256")

ACC = 128
def acc(nb, mb):
    return ACC + (nb * 4 + mb) * 16
def accr(nb, mb):
    b = acc(nb, mb)
    return f"v[{b}:{b+15}]"
FR = 32
def xfrag(p, mb):
    return FR + p * 24 + mb * 4
def wfrag(p, nb):
    return FR + p * 24 + 16 + nb * 4
V_XRD = 4
V_WRD = 12
V_EW = 96
V_T = 100
V_DMA = 116

def cons_reads(s, p):
    r = []
    def wr(nb):
        b = wfrag(p, nb)
        for j2 in range(2):
            off = (16 * s + 4 * j2) * 256
            r.append(f"ds_read_b64_tr_b16 v[{b+2*j2}:{b+2*j2+1}], v{V_WRD+nb} offset:{off}")
    def xr(mb):
        b = xfrag(p, mb)
        off = mb * 4096
        r.append(f"ds_read_b128 v[{b}:{b+3}], v{V_XRD + s} offset:{off}")
    wr(0)
    for mb in range(4):
        xr(mb)
    wr(1)
    return r

def cons_mfmas(p):
    r = []
    for nb in range(2):
        for mb in range(4):
            w = wfrag(p, nb); x = xfrag(p, mb)
            r.append(f"v_mfma_f32_32x32x16_bf16 {accr(nb,mb)}, v[{w}:{w+3}], v[{x}:{x+3}], {accr(nb,mb)}")
    return r

def a_dma():
    r = []
    for half in range(2):
        for i4 in range(4):
            i = half * 4 + i4
            g = []
            if i4 == 0:
                g.append(f"s_add_u32 m0, s34, {half*4096}")
                g.append("s_nop 0")
            g.append(f"buffer_load_dwordx4 v{V_DMA+i}, s[{S_X}:{S_X+3}], s28 offen offset:{i4*1024}{NT('ntx')} lds")
            r.append(g)
    return r

def kstep(mf, reads, extra):
    fi = 0
    for i, m in enumerate(mf):
        e(m)
        for _ in range(2):
            if fi < len(reads):
                e(reads[fi]); fi += 1
        for x in extra.get(i, []): e(x)

def merge(main, side):
    res = []
    n = len(side)
    if n == 0:
        return list(main)
    L = len(main)
    si = 0
    for i, m in enumerate(main):
        while si < n and si * L <= i * n:
            res.extend(side[si]); si += 1
        res.append(m)
    while si < n:
        res.extend(side[si]); si += 1
    return res

def gen():
    out.clear()
    e("s_cmp_ge_u32 s2, 256")
    e("s_cbranch_scc1 L_end")
    e("s_load_dwordx8 s[4:11], s[0:1], 0")
    e("v_lshrrev_b32 v1, 6, v0")
    e("v_and_b32 v2, 63, v0")
    e("s_and_b32 s32, s2, 7")
    e("v_readfirstlane_b32 s3, v1")
    e("s_lshr_b32 s33, s2, 3")
    e("s_lshl_b32 s32, s32, 2")
    e("s_lshr_b32 s40, s33, 3")
    e("s_add_u32 s32, s32, s40")
    e("s_and_b32 s33, s33, 7")
    e("s_mov_b32 s37, 0x1000000")
    e("s_mov_b32 s38, 0x200000")
    e("s_mov_b32 s39, s3")
    if "norot" in FLAGS:
        e("s_mov_b32 s28, 0")
    elif "rotn8" in FLAGS:
        e("s_lshl_b32 s28, s33, 8")
    elif "rotn4" in FLAGS:
        e("s_and_b32 s28, s33, 3")
        e("s_lshl_b32 s28, s28, 9")
    elif "rotn2" in FLAGS:
        e("s_and_b32 s28, s33, 1")
        e("s_lshl_b32 s28, s28, 10")
    else:
        e("s_and_b32 s28, s32, 3")
        e("s_lshl_b32 s28, s28, 9")
    e("s_lshl_b32 s29, s28, 10")
    SWB = 1 if "sw1" in FLAGS else (3 if "sw2" in FLAGS else (7 if "sw3" in FLAGS else 0))
    if SWB:
        if "swx" in FLAGS:
            e("s_mov_b32 s49, s33")
        else:
            e("s_xor_b32 s49, s32, s33")
        e(f"s_and_b32 s49, s49, {SWB}")
        e("s_lshl_b32 s59, s49, 17")
        e("s_lshl_b32 s49, s49, 7")
        e("s_mov_b32 s57, 0")
        e("s_mov_b32 s58, 0")
        e("s_mov_b32 s28, s49")
        e("s_mov_b32 s29, s59")
    e("s_waitcnt lgkmcnt(0)")
    for (srd, p, sz) in ((S_X, 4, "0x1000000"), (S_W, 6, "0x200000"), (S_B, 8, "0x800"), (S_O, 10, "0x1000000")):
        e(f"s_mov_b32 s{srd}, s{p}")
        e(f"s_and_b32 s{srd+1}, s{p+1}, 0xffff")
        e(f"s_mov_b32 s{srd+2}, {sz}")
        e(f"s_mov_b32 s{srd+3}, 0x00020000")
    if STAMP:
        e("s_load_dwordx2 s[52:53], s[0:1], 40")
        e("s_waitcnt lgkmcnt(0)")
        e("s_and_b32 s53, s53, 0xffff")
        e("s_mov_b32 s54, 0x1000000")
        e("s_mov_b32 s55, 0x00020000")
        e("s_lshl_b32 s56, s2, 3")
        e("s_add_u32 s56, s56, s3")
        e("s_lshl_b32 s56, s56, 10")
        e("v_mov_b32 v31, s56")
        rstamp()
        stamp()
    BST = 48; TP = 32
    def b_loads(q):
        r = []
        for i in range(4):
            b = BST + q * 16 + i * 4
            va = 12 + (i >> 1)
            r.append([f"buffer_load_dwordx4 v[{b}:{b+3}], v{va}, s[{S_W}:{S_W+3}], s29 offen offset:{(i&1)*2048}{NT('ntw')}"])
        return r
    def prune_col(q, d, T):
        w = [BST + q * 16 + i * 4 + d for i in range(4)]
        a = [T + i for i in range(4)]
        r = []
        for i in range(4):
            r.append(f"v_and_b32 v{a[i]}, s35, v{w[i]}")
        r.append(f"v_pk_max_u16 v{T+4}, v{a[0]}, v{a[1]}")
        r.append(f"v_pk_min_u16 v{T+5}, v{a[0]}, v{a[1]}")
        r.append(f"v_pk_max_u16 v{T+6}, v{a[2]}, v{a[3]}")
        r.append(f"v_pk_min_u16 v{T+7}, v{a[2]}, v{a[3]}")
        r.append(f"v_pk_min_u16 v{T+4}, v{T+4}, v{T+6}")
        r.append(f"v_pk_max_u16 v{T+5}, v{T+5}, v{T+7}")
        r.append(f"v_pk_max_u16 v{T+4}, v{T+4}, v{T+5}")
        for i in range(4):
            r.append(f"v_pk_sub_i16 v{a[i]}, v{a[i]}, v{T+4}")
        for i in range(4):
            r.append(f"v_pk_ashrrev_i16 v{a[i]}, s36, v{a[i]}")
        for i in range(4):
            r.append(f"v_bfi_b32 v{w[i]}, v{a[i]}, 0, v{w[i]}")
        return r
    def prune_ops(q):
        r = []
        for dp in range(2):
            c0 = prune_col(q, 2 * dp, TP)
            c1 = prune_col(q, 2 * dp + 1, TP + 8)
            for x, y in zip(c0, c1):
                r.append(x); r.append(y)
        return r
    def b_writes(q, off):
        for i in range(4):
            b = BST + q * 16 + i * 4
            e(f"ds_write_b128 v{14+i}, v[{b}:{b+3}] offset:{off}")
    def emit_groups(gs):
        for g in gs:
            for x in g: e(x)

    e("s_and_b32 s40, s3, 3")
    e("s_lshr_b32 s48, s3, 2")
    e("s_mov_b32 s35, 0x7fff7fff")
    e("s_mov_b32 s36, 0x000f000f")
    e("v_lshrrev_b32 v21, 4, v2")
    e("s_lshl_b32 s40, s40, 2")
    e("v_add_u32 v20, s40, v21")
    e("v_and_b32 v22, 15, v2")
    e("v_lshlrev_b32 v23, 13, v20")
    e("s_lshl_b32 s41, s33, 8")
    e("v_lshl_add_u32 v24, v22, 4, s41")
    e("v_add_u32 v12, v23, v24")
    e("v_add_u32 v13, 0x1000, v12")
    e("s_lshl_b32 s41, s48, 17")
    if SWB:
        e("s_add_u32 s58, s58, s41")
        e("s_xor_b32 s29, s58, s59")
    else:
        e("s_add_u32 s29, s29, s41")
        e("s_and_b32 s29, s29, 0x1fffff")
    emit_groups(b_loads(1))
    e("v_lshlrev_b32 v23, 10, v20")
    e("v_and_b32 v24, 3, v22")
    e("v_lshl_add_u32 v23, v24, 4, v23")
    e("s_lshl_b32 s41, s48, 14")
    e("v_add_u32 v23, s41, v23")
    e("v_lshrrev_b32 v24, 2, v22")
    for i in range(4):
        e(f"v_xor_b32 v25, {i}, v24")
        e(f"v_lshl_add_u32 v25, v25, 6, v23")
        e(f"v_add_u32 v{26+i}, {i*256}, v25")
    e("s_lshl_b32 s40, s32, 8")
    e("s_and_b32 s41, s3, 3")
    e("s_lshl_b32 s41, s41, 6")
    e("s_add_u32 s40, s40, s41")
    e("v_lshrrev_b32 v20, 3, v2")
    e("v_add_u32 v20, s40, v20")
    e("v_lshlrev_b32 v20, 11, v20")
    e("v_lshrrev_b32 v21, 4, v2")
    e("v_and_b32 v22, 7, v2")
    e("v_xor_b32 v23, v22, v21")
    e("v_xor_b32 v24, 4, v23")
    e("v_lshl_add_u32 v23, v23, 4, v20")
    e("v_lshl_add_u32 v24, v24, 4, v20")
    for i in range(8):
        src = 23 if (i & 1) == 0 else 24
        add = i * 16384 - (i & 3) * 1024
        e(f"v_add_u32 v{V_DMA+i}, {add}, v{src}")
    e("s_cmp_ge_u32 s3, 4")
    e("s_cbranch_scc1 L_producer")

    def adv_a():
        if SWB: return ["s_add_u32 s57, s57, 128", "s_xor_b32 s28, s57, s49"]
        return ["s_add_u32 s28, s28, 128", "s_and_b32 s28, s28, 2047"]
    def adv_b():
        if SWB:
            e("s_add_u32 s58, s58, 0x20000")
            e("s_xor_b32 s29, s58, s59")
            return
        e("s_add_u32 s29, s29, 0x20000")
        e("s_and_b32 s29, s29, 0x1fffff")

    if "noprio" not in FLAGS:
        e("s_setprio 2")
    e("s_lshl_b32 s47, s3, 13")
    e(f"s_add_u32 s47, s47, {A_BASE}")
    e("s_mov_b32 s34, s47")
    e("s_lshr_b32 s40, s3, 1")
    e("s_and_b32 s41, s3, 1")
    e("v_lshrrev_b32 v3, 5, v2")
    e("s_lshl_b32 s42, s33, 8")
    e("s_lshl_b32 s43, s41, 7")
    e("s_add_u32 s42, s42, s43")
    e("v_lshlrev_b32 v16, 3, v3")
    e("v_add_u32 v16, s42, v16")
    for st in range(2):
        for g in a_dma():
            for x in g: e(x)
        for x in adv_a(): e(x)
        e(f"s_add_u32 s34, s34, {A_STAGE}")
        if st == 0:
            for nb in range(2):
                for q in range(4):
                    b = 80 + (nb * 4 + q) * 2
                    e(f"buffer_load_dwordx2 v[{b}:{b+1}], v16, s[{S_B}:{S_B+3}], 0 offen offset:{nb*64+q*16}")
    e("v_and_b32 v24, 31, v2")
    e("v_bfe_u32 v25, v2, 1, 3")
    e("s_lshl_b32 s42, s40, 14")
    e(f"s_add_u32 s42, s42, {A_BASE}")
    e("v_lshlrev_b32 v17, 7, v24")
    e("v_add_u32 v17, s42, v17")
    for s in range(4):
        e(f"v_add_u32 v18, {2*s}, v3")
        e("v_xor_b32 v18, v18, v25")
        e(f"v_lshl_add_u32 v{V_XRD+4+s}, v18, 4, v17")
        e(f"v_mov_b32 v{V_XRD+s}, v{V_XRD+4+s}")
    e("v_bfe_u32 v18, v2, 2, 2")
    e("v_lshl_add_u32 v19, v3, 3, v18")
    e("v_lshlrev_b32 v19, 8, v19")
    e("v_bfe_u32 v20, v2, 4, 1")
    e("v_lshl_add_u32 v19, v20, 5, v19")
    e("v_and_b32 v20, 3, v2")
    e("v_lshl_add_u32 v19, v20, 3, v19")
    e("s_lshl_b32 s42, s41, 1")
    for nb in range(2):
        e(f"s_add_u32 s43, s42, {nb}")
        e("v_xor_b32 v20, s43, v18")
        e(f"v_lshl_add_u32 v{V_WRD+2+nb}, v20, 6, v19")
        e(f"v_mov_b32 v{V_WRD+nb}, v{V_WRD+2+nb}")
    e("s_lshl_b32 s42, s40, 15")
    e(f"s_add_u32 s42, s42, {A_BASE}")
    e("v_lshlrev_b32 v20, 8, v24")
    e("v_add_u32 v20, s42, v20")
    e("v_and_b32 v21, 7, v2")
    e("s_lshl_b32 s42, s41, 3")
    for nb in range(2):
        for qq in range(2):
            e(f"s_add_u32 s43, s42, {nb*4+qq*2}")
            e("v_add_u32 v22, s43, v3")
            e("v_xor_b32 v22, v22, v21")
            e(f"v_lshl_add_u32 v{V_EW+nb*2+qq}, v22, 4, v20")
    e("s_waitcnt vmcnt(24)")
    e("s_branch L_prune0")
    lab("L_cons2")
    e("s_waitcnt vmcnt(8)")
    e("s_mov_b32 s42, 0xffff0000")
    for nb in range(2):
        for q in range(4):
            b = 80 + (nb * 4 + q) * 2
            a = acc(nb, 0) + 4 * q
            e(f"v_lshlrev_b32 v{a}, 16, v{b}")
            e(f"v_and_b32 v{a+1}, s42, v{b}")
            e(f"v_lshlrev_b32 v{a+2}, 16, v{b+1}")
            e(f"v_and_b32 v{a+3}, s42, v{b+1}")
    for nb in range(2):
        for mb in range(1, 4):
            for r in range(16):
                e(f"v_mov_b32 v{acc(nb,mb)+r}, v{acc(nb,0)+r}")
    e("s_waitcnt lgkmcnt(0)")
    for r in range(FR + 24, FR + 48):
        e(f"v_mov_b32 v{r}, 0")
    e("s_mov_b32 s31, 0")
    e("s_mov_b32 s44, 0")
    e(f"s_mov_b32 s45, {2*A_STAGE}")
    e("s_waitcnt lgkmcnt(0)")
    stamp()
    e("s_barrier")
    stamp()
    lab("L_cloop")
    d = a_dma()
    pre = ["s_cmp_lt_u32 s31, 14", f"s_cselect_b32 s{S_X+2}, s37, 0", "s_add_u32 s34, s47, s45"]
    kstep(cons_mfmas(1), cons_reads(0, 0), {3: pre, 4: d[0], 6: d[1]})
    e("s_waitcnt lgkmcnt(0)")
    kstep(cons_mfmas(0), cons_reads(1, 1), {4: d[2], 6: d[3]})
    e("s_waitcnt lgkmcnt(0)")
    adv = [f"s_add_u32 s44, s44, {B_SLOT}", f"s_cmp_eq_u32 s44, {3*B_SLOT}", "s_cselect_b32 s44, 0, s44",
           "s_lshl_b32 s46, s44, 1",
           f"s_add_u32 s45, s45, {A_STAGE}", f"s_cmp_eq_u32 s45, {3*A_STAGE}", "s_cselect_b32 s45, 0, s45"]
    kstep(cons_mfmas(1), cons_reads(2, 0), {4: d[4], 5: adv[:4], 6: d[5], 7: adv[4:]})
    e("s_waitcnt lgkmcnt(0)")
    upd = [f"v_add_u32 v{V_XRD+s}, s46, v{V_XRD+4+s}" for s in range(4)] + \
          [f"v_add_u32 v{V_WRD+nb}, s44, v{V_WRD+2+nb}" for nb in range(2)]
    kstep(cons_mfmas(0), cons_reads(3, 1), {4: d[6] + upd[:3], 5: upd[3:], 6: d[7] + adv_a(), 7: ["s_add_u32 s31, s31, 1", "s_cmp_lt_u32 s31, 16"]})
    e("s_cbranch_scc1 L_cnodrain")
    e("s_waitcnt vmcnt(0)")
    lab("L_cnodrain")
    e("s_waitcnt vmcnt(8) lgkmcnt(0)")
    stamp()
    e("s_barrier")
    stamp2()
    e("s_cbranch_scc1 L_cloop")
    blocks = [(nb, mb) for mb in range(4) for nb in range(2)]
    mf = []
    for (nb, mb) in blocks:
        w = wfrag(1, nb); x = xfrag(1, mb)
        mf.append(f"v_mfma_f32_32x32x16_bf16 {accr(nb,mb)}, v[{w}:{w+3}], v[{x}:{x+3}], {accr(nb,mb)}")
    def conv(bi):
        nb, mb = blocks[bi]
        a = acc(nb, mb)
        t = V_T if (bi & 1) == 0 else V_T + 8
        for j in range(8):
            e(f"v_cvt_pk_bf16_f32 v{t+j}, v{a+2*j}, v{a+2*j+1}")
        e("s_nop 1")
        for qq in range(2):
            b = t + qq * 4
            e(f"v_permlane32_swap_b32 v{b}, v{b+2}")
            e(f"v_permlane32_swap_b32 v{b+1}, v{b+3}")
        for qq in range(2):
            b = t + qq * 4
            e(f"ds_write_b128 v{V_EW+nb*2+qq}, v[{b}:{b+3}] offset:{mb*8192}")
    for i, m in enumerate(mf):
        e(m)
        if i == 2:
            e("s_nop 9")
        if i >= 2:
            conv(i - 2)
        if i == 5:
            e("s_waitcnt lgkmcnt(0)")
            e("s_barrier")
    e("s_nop 15")
    conv(6)
    e("s_nop 7")
    conv(7)
    stamp()
    e("s_branch L_store")

    lab("L_producer")
    adv_b()
    emit_groups(b_loads(2)); adv_b()
    emit_groups(b_loads(3)); adv_b()
    for i in range(4):
        e(f"v_subrev_u32 v{4+i}, {B_SLOT}, v{26+i}")
    e("s_waitcnt vmcnt(8)")
    lab("L_prune0")
    for x in prune_ops(1): e(x)
    for i in range(4):
        b = BST + 16 + i * 4
        e(f"ds_write_b128 v{26+i}, v[{b}:{b+3}]")
    e("s_cmp_lt_u32 s3, 4")
    e("s_cbranch_scc1 L_cons2")
    e("s_mov_b32 s30, 0")
    e("s_mov_b32 s31, 0")
    e(f"s_mov_b32 s44, {2*B_SLOT}")
    stamp()
    e("s_barrier")
    stamp()
    lab("L_ploop")
    for u in range(4):
        e("s_cmp_lt_u32 s31, 12")
        e(f"s_cselect_b32 s{S_W+2}, s38, 0")
        e("s_add_u32 s31, s31, 1")
        for i in range(4):
            e(f"v_add_u32 v{14+i}, s44, v{4+i}")
        e(f"s_add_u32 s44, s44, {B_SLOT}")
        e(f"s_cmp_eq_u32 s44, {3*B_SLOT}")
        e("s_cselect_b32 s44, 0, s44")
        e("s_waitcnt vmcnt(4)")
        q = (u + 2) & 3
        for x in merge(prune_ops(q), b_loads(u)): e(x)
        b_writes(q, 0)
        adv_b()
        if u == 3:
            e("s_add_u32 s30, s30, 1")
            e("s_cmp_lt_u32 s30, 4")
        if STAMP and "pstamp" in FLAGS:
            e("s_waitcnt lgkmcnt(4)")
            e("s_memtime s[50:51]")
            e("s_waitcnt lgkmcnt(0)")
            e("v_mov_b32 v30, s50")
            e("buffer_store_dword v30, v31, s[52:55], 0 offen")
            e("v_add_u32 v31, 4, v31")
        else:
            e("s_waitcnt lgkmcnt(4)")
        e("s_barrier")
        if "pstamp" in FLAGS: stamp2()
    e("s_cbranch_scc1 L_ploop")

    def addr_calc(rowbase_sgpr):
        e("v_lshrrev_b32 v16, 4, v2")
        e("v_and_b32 v17, 15, v2")
        e(f"v_add_u32 v18, {rowbase_sgpr}, v16")
        e("v_xor_b32 v19, v17, v16")
        e("v_xor_b32 v20, 4, v19")
        e("v_lshlrev_b32 v21, 8, v18")
        e(f"v_add_u32 v21, {A_BASE}, v21")
        e("v_lshl_add_u32 v19, v19, 4, v21")
        e("v_lshl_add_u32 v20, v20, 4, v21")
        e("s_lshl_b32 s41, s32, 8")
        e("v_add_u32 v18, s41, v18")
        e("v_lshlrev_b32 v18, 11, v18")
        e("s_lshl_b32 s41, s33, 8")
        e("v_lshl_add_u32 v21, v17, 4, s41")
        e("v_add_u32 v18, v18, v21")
    def store_rows(n, rb):
        for j in range(n):
            va = 19 if (j & 1) == 0 else 20
            e(f"ds_read_b128 v[{rb+4*j}:{rb+3+4*j}], v{va} offset:{j*1024}")
        for j in range(n):
            e(f"s_mov_b32 s42, {j*8192}")
            e(f"s_waitcnt lgkmcnt({n-1-j})")
            e(f"buffer_store_dwordx4 v[{rb+4*j}:{rb+3+4*j}], v18, s[{S_O}:{S_O+3}], s42 offen{NT('nto')}")
    e("s_waitcnt vmcnt(0) lgkmcnt(0)")
    e("s_and_b32 s40, s39, 3")
    e("s_lshr_b32 s43, s40, 1")
    e("s_lshl_b32 s43, s43, 7")
    e("s_and_b32 s40, s40, 1")
    e("s_lshl_b32 s40, s40, 5")
    e("s_add_u32 s40, s40, s43")
    addr_calc("s40")
    e("s_barrier")
    store_rows(8, 32)
    lab("L_store")
    e("s_lshr_b32 s43, s39, 2")
    e("s_lshl_b32 s43, s43, 7")
    e("s_and_b32 s40, s39, 3")
    e("s_lshl_b32 s40, s40, 4")
    e("s_add_u32 s40, s40, s43")
    e("s_add_u32 s40, s40, 64")
    addr_calc("s40")
    e("s_waitcnt lgkmcnt(0)")
    e("s_barrier")
    store_rows(4, 64)
    stamp()
    if STAMP:
        e("s_waitcnt vmcnt(0)")
        stamp()
        rstamp()
    lab("L_end")
    e("s_endpgm")
    return HEADER.format(k=KNAME, lds=LDS_BYTES) + "\n".join(out) + "\n" + FOOTER.format(k=KNAME, nv=256, ao=256)

if __name__ == "__main__":
    path = sys.argv[1] if len(sys.argv) > 1 else "standalone__structured_sparse_n_m__ragged.s"
    for a in sys.argv[2:]:
        if a == "stamp": STAMP = True
        else: FLAGS.add(a)
    open(path, "w").write(gen())
    print("wrote", path)
```
